```python
import torch

def _softmax(x, axis=-1):
    return torch.softmax(x, dim=axis)
def _gelu(x):
    return torch.nn.functional.gelu(x, approximate="tanh")
def _silu(x):
    return torch.nn.functional.silu(x)
def _sigmoid(x):
    return torch.sigmoid(x)
def _layernorm(x, axis=-1, eps=1e-5):
    m = x.mean(dim=axis, keepdim=True)
    v = x.var(dim=axis, keepdim=True, unbiased=False)
    return (x - m) / torch.sqrt(v + eps)
def _scatter_add(tgt, idx, src, axis=0):
    return tgt.clone().index_add_(axis, idx, src)
def _segment_sum(src, seg, n):
    out = torch.zeros((n,) + src.shape[1:], dtype=src.dtype)
    return out.index_add_(0, seg, src)
def _pad(x, pw):
    flat = tuple(v for pair in reversed(pw) for v in pair)
    return torch.nn.functional.pad(x, flat)

kernel_name = 'gated_mix__ssm_conv_s4__dense_activation_mish__prompt'

def setup_inputs():

    _w = (lambda a: (lambda t: t.to(torch.bfloat16) if t.is_floating_point() else t)(torch.as_tensor(a)))
    def _A_setup():
        B, L, D, N = 1, 2048, 512, 128
        A_re = -(lambda _x: torch.exp(torch.as_tensor(_x)))((lambda *s: torch.randn(*s, dtype=torch.bfloat16) * 6.4)(D, N))
        A_im = torch.pi * (lambda *s: torch.randn(*s, dtype=torch.bfloat16) * 0.05)(D, N)
        B_re = (lambda *s: torch.randn(*s, dtype=torch.bfloat16) * 0.1)(D, N)
        B_im = (lambda *s: torch.randn(*s, dtype=torch.bfloat16) * 0.1)(D, N)
        C_re = (lambda *s: torch.randn(*s, dtype=torch.bfloat16) * 0.1)(D, N)
        C_im = (lambda *s: torch.randn(*s, dtype=torch.bfloat16) * 0.1)(D, N)
        log_dt = (lambda *s: torch.randn(*s, dtype=torch.bfloat16) * 0.05)(D) * 0.5 - 4.0
        Dskip = (lambda *s: torch.randn(*s, dtype=torch.bfloat16) * 0.05)(D)
        return {
            "u": _w((lambda *s: torch.randn(*s, dtype=torch.bfloat16) * 0.05)(B, L, D)),
            "A_re": _w(A_re),
            "A_im": _w(A_im),
            "B_re": _w(B_re),
            "B_im": _w(B_im),
            "C_re": _w(C_re),
            "C_im": _w(C_im),
            "log_dt": _w(log_dt),
            "Dskip": _w(Dskip),
        }
    _A_in = _A_setup()

    def _B_setup():
        B, S, D, F = 1, 2048, 512, 1792
        return {
            "x": _w((lambda *s: torch.randn(*s, dtype=torch.bfloat16) * 0.05)(B, S, D)),
            "w1": _w((lambda *s: torch.randn(*s, dtype=torch.bfloat16) * 6.4)(D, F) * (D ** -0.5)),
            "b1": _w((lambda *s: torch.randn(*s, dtype=torch.bfloat16) * 0.05)(F)),
            "w2": _w((lambda *s: torch.randn(*s, dtype=torch.bfloat16) * 0.05)(F, D) * (F ** -0.5)),
        }
    _B_in = _B_setup()

    return {
        "A_u": _A_in["u"],
        "A_A_re": _A_in["A_re"],
        "A_A_im": _A_in["A_im"],
        "A_B_re": _A_in["B_re"],
        "A_B_im": _A_in["B_im"],
        "A_C_re": _A_in["C_re"],
        "A_C_im": _A_in["C_im"],
        "A_log_dt": _A_in["log_dt"],
        "A_Dskip": _A_in["Dskip"],
        "B_x": _B_in["x"],
        "B_w1": _B_in["w1"],
        "B_b1": _B_in["b1"],
        "B_w2": _B_in["w2"],
        "gate_w": _w((lambda *s: torch.randn(*s, dtype=torch.bfloat16) * 0.05)(512) * 16.0),
    }

def reference(A_u, A_A_re, A_A_im, A_B_re, A_B_im, A_C_re, A_C_im, A_log_dt, A_Dskip, B_x, B_w1, B_b1, B_w2, gate_w):
    def _A_ref(u, A_re, A_im, B_re, B_im, C_re, C_im, log_dt, Dskip):
        Bsz, L, D = u.shape
        dt = torch.exp(log_dt)[:, None]
        A = A_re + 1j * A_im
        Bc = B_re + 1j * B_im
        Cc = C_re + 1j * C_im
        logdA = dt * A
        dB = dt * Bc
        l = (lambda x, dt: x.to(dt))(torch.arange(L), A_re.dtype)
        P = torch.exp(logdA[:, :, None] * l[None, None, :])
        K = torch.einsum("dn,dnl,dn->dl", Cc, P, dB).real
        L2 = 2 * L
        Kp = _pad(K, ((0, 0), (0, L)))
        up = (lambda x, *d: x.permute(*d))(u, 0, 2, 1)
        up = _pad(up, ((0, 0), (0, 0), (0, L)))
        Kf = (lambda x, axes=(-2,-1): torch.fft.rfft2(x.float(), dim=axes))(Kp[:, None, :], axes=(-2, -1))
        Uf = (lambda x, axes=(-2,-1): torch.fft.rfft2(x.float(), dim=axes))(up[:, :, None, :], axes=(-2, -1))
        Yf = Uf * Kf[None, :, :, :]
        y = (lambda x, s, axes=(-2,-1): torch.fft.irfft2(x, s=s, dim=axes).to(torch.bfloat16))(Yf, (1, L2), axes=(-2, -1))[:, :, 0, :L]
        y = (lambda x, *d: x.permute(*d))(y, 0, 2, 1) + u * Dskip[None, None, :]
        return y

    def _B_ref(x, w1, b1, w2):
        h = torch.einsum("bsd,df->bsf", x, w1) + b1
        sp = torch.log1p(torch.exp(-torch.abs(h))) + torch.where(h > 0, h, torch.zeros_like(h))
        act = h * torch.tanh(sp)
        return torch.einsum("bsf,fd->bsd", act, w2)

    x = A_u
    g = _sigmoid((x * gate_w).sum(-1, keepdims=True))
    a = _A_ref(x, A_A_re, A_A_im, A_B_re, A_B_im, A_C_re, A_C_im, A_log_dt, A_Dskip)
    b = _B_ref(x, B_w1, B_b1, B_w2)
    return g * a + (1 - g) * b
```

```python
import re

TRANS = ("v_exp_f32", "v_log_f32", "v_rcp_f32", "v_rsq_f32", "v_sqrt_f32", "v_sin_f32", "v_cos_f32")
REG_RE = re.compile(r"^(-|abs\()?([vas])(\d+)\)?$")
RANGE_RE = re.compile(r"^(-)?([vas])\[(\d+):(\d+)\]$")


def parse_operand(tok):
    tok = tok.strip()
    m = REG_RE.match(tok)
    if m:
        return {(m.group(2), int(m.group(3)))}
    m = RANGE_RE.match(tok)
    if m:
        return {(m.group(2), i) for i in range(int(m.group(3)), int(m.group(4)) + 1)}
    if tok == "vcc":
        return {("s", "vcc")}
    if tok == "exec":
        return {("s", "exec")}
    if tok == "m0":
        return {("s", "m0")}
    return set()


class Ins:
    __slots__ = ("text", "op", "ops", "defs", "uses", "cls", "states", "passes", "srcc", "srcab", "mods")

    def __init__(self, text):
        self.text = text
        body = text.split(";")[0].strip()
        parts = body.split(None, 1)
        self.op = parts[0]
        rest = parts[1] if len(parts) > 1 else ""
        toks = [t.strip() for t in rest.split(",")] if rest else []
        mods = ""
        if toks:
            last = toks[-1].split(None, 1)
            toks[-1] = last[0]
            mods = last[1] if len(last) > 1 else ""
        self.mods = mods
        self.ops = toks
        self.defs, self.uses = set(), set()
        self.srcc, self.srcab = set(), set()
        self.passes = 0
        self.states = 1
        op = self.op
        R = [parse_operand(t) for t in toks]
        if op == "s_nop":
            self.cls = "nop"
            self.states = int(toks[0], 0) + 1
        elif op.startswith("v_mfma"):
            self.cls = "mfma"
            self.passes = 8 if "32x32x16" in op else 4
            self.defs = R[0]
            self.srcab = R[1] | R[2]
            self.srcc = R[3]
            self.uses = self.srcab | self.srcc
        elif op.startswith("v_cmp"):
            self.cls = "valu"
            self.defs = R[0]
            self.uses = set().union(*R[1:])
        elif op.startswith("v_readfirstlane") or op.startswith("v_readlane"):
            self.cls = "valu"
            self.defs = R[0]
            self.uses = set().union(*R[1:])
        elif op.startswith("v_permlane"):
            self.cls = "valu"
            self.defs = R[0] | R[1]
            self.uses = R[0] | R[1]
        elif op.startswith("v_"):
            self.cls = "valu"
            self.defs = set(R[0])
            start = 1
            if op.startswith(("v_add_co", "v_addc_co", "v_sub_co", "v_subb_co")):
                self.defs |= R[1]
                start = 2
            self.uses = set().union(*R[start:]) if len(R) > start else set()
            if op.startswith(("v_fmac", "v_dot2c")) or "dpp" in op or "row_" in mods or "quad_perm" in mods:
                self.uses |= R[0]
            if op.startswith("v_cndmask") and len(toks) == 3:
                self.uses |= {("s", "vcc")}
        elif op.startswith("ds_"):
            self.cls = "ds"
            if op.startswith(("ds_read", "ds_bpermute", "ds_permute", "ds_swizzle")):
                self.defs = R[0]
                self.uses = set().union(*R[1:])
                if "d16" in op:
                    self.uses |= R[0]
            else:
                self.uses = set().union(*R)
        elif op.startswith(("buffer_", "global_")):
            self.cls = "vmem"
            lds = " lds" in (" " + mods) or "_lds_" in op
            if op.startswith("buffer_inv") or op.startswith("buffer_wbl2"):
                pass
            elif "store" in op or ("atomic" in op and "sc0" not in mods):
                self.uses = set().union(*R)
            elif lds:
                self.uses = set().union(*R) | {("s", "m0")}
            else:
                self.defs = R[0]
                self.uses = set().union(*R[1:])
                if "d16" in op or "atomic" in op:
                    self.uses |= R[0]
        elif op.startswith("s_"):
            self.cls = "salu"
            if op.startswith(("s_cmp", "s_cbranch", "s_branch", "s_waitcnt", "s_barrier", "s_endpgm", "s_sleep",
                              "s_setprio", "s_bitcmp")):
                self.uses = set().union(*R) if R else set()
            elif op.endswith("saveexec_b64"):
                self.defs = R[0] | {("s", "exec")}
                self.uses = set().union(*R[1:]) | {("s", "exec")}
            else:
                self.defs = R[0] if R else set()
                self.uses = set().union(*R[1:]) if len(R) > 1 else set()
        else:
            raise ValueError("unknown instruction: " + text)

    def is_trans(self):
        return self.op.replace("_e32", "").replace("_e64", "") in TRANS

    def is_dpp(self):
        return self.cls == "valu" and ("row_" in self.mods or "quad_perm" in self.mods or "wave_" in self.mods)

    def is_wide_store(self):
        return self.cls == "vmem" and "store" in self.op and ("x3" in self.op or "x4" in self.op)

    def store_data(self):
        if self.op.startswith("buffer_"):
            return parse_operand(self.ops[0])
        return parse_operand(self.ops[1])


def vregs(s):
    return {r for r in s if r[0] in "va"}


def sregs(s):
    return {r for r in s if r[0] == "s"}


def need(prev, cur):
    n = 0
    pv, cv = prev, cur
    if pv.cls == "valu":
        wv = vregs(pv.defs)
        ws = sregs(pv.defs)
        if cv.cls == "mfma" and wv & cv.uses:
            n = max(n, 2)
        if cv.op.startswith(("v_readfirstlane", "v_readlane")) and wv & cv.uses:
            n = max(n, 1)
        if cv.op.startswith("v_permlane") and wv & cv.uses:
            n = max(n, 2)
        if cv.is_dpp() and wv & cv.uses:
            n = max(n, 2)
        if pv.is_trans() and cv.cls in ("valu", "mfma") and wv & cv.uses:
            n = max(n, 1)
        if ws:
            if cv.cls == "valu" and ws & cv.uses:
                n = max(n, 2)
            if cv.op.startswith(("v_readlane", "v_writelane")) and ws & cv.uses:
                n = max(n, 4)
            if cv.cls == "vmem" and ws & cv.uses:
                n = max(n, 5)
            if cv.cls == "salu" and ws & cv.uses:
                n = max(n, 1)
        if ("op_sel:[0,0,0,1]" in pv.mods or "dst_sel" in pv.mods) and cv.cls == "valu" and wv & (cv.uses | cv.defs):
            n = max(n, 1)
    if pv.cls == "mfma":
        d = pv.defs
        big = 12 if pv.passes == 8 else 8
        if cv.cls == "mfma":
            if d & cv.srcab:
                n = max(n, big)
            if d & cv.srcc and not (d == cv.srcc and pv.passes == cv.passes):
                n = max(n, 10 if pv.passes == 8 else 6)
            if d & cv.defs and not (d == cv.defs and cv.srcc == d and pv.passes == cv.passes):
                n = max(n, big)
        elif cv.cls in ("valu", "vmem", "ds"):
            if d & (cv.uses | cv.defs):
                n = max(n, big)
        if cv.cls == "valu" and pv.srcc & cv.defs:
            n = max(n, 7 if pv.passes == 8 else 3)
    if pv.cls == "salu" and ("s", "m0") in pv.defs and ("s", "m0") in cv.uses and cv.cls in ("vmem", "ds"):
        n = max(n, 1)
    if pv.is_wide_store():
        data = pv.store_data()
        if data & cv.defs:
            n = max(n, 2 if cv.cls == "valu" else 1)
    return n


class Asm:
    def __init__(self):
        self.items = []
        self.uid = 0
        self.auto = True
        self.lg = []
        self.vm = []

    def _track(self, text):
        ins = Ins(text)
        if ins.op == "s_waitcnt":
            m = re.search(r"vmcnt\((\d+)\)", text)
            if m:
                n = int(m.group(1))
                self.vm = self.vm[len(self.vm) - n:] if n and len(self.vm) > n else ([] if not n else self.vm)
            m = re.search(r"lgkmcnt\((\d+)\)", text)
            if m:
                n = int(m.group(1))
                self.lg = self.lg[len(self.lg) - n:] if n and len(self.lg) > n else ([] if not n else self.lg)
            return
        touched = vregs(ins.uses | ins.defs)
        if self.auto and touched:
            w = []
            idx = max((i for i, d in enumerate(self.lg) if d & touched), default=-1)
            if idx >= 0:
                n = min(len(self.lg) - 1 - idx, 15)
                w.append(f"lgkmcnt({n})")
                self.lg = self.lg[len(self.lg) - n:] if n else []
            idx = max((i for i, (d, _) in enumerate(self.vm) if d & touched), default=-1)
            if idx >= 0:
                n = min(len(self.vm) - 1 - idx, 63)
                w.append(f"vmcnt({n})")
                self.vm = self.vm[len(self.vm) - n:] if n else []
            if w:
                self.items.append(("i", "s_waitcnt " + " ".join(w)))
        if ins.cls == "ds":
            self.lg.append(vregs(ins.defs))
        elif ins.cls == "vmem" and not ins.op.startswith(("buffer_inv", "buffer_wbl2")):
            self.vm.append((vregs(ins.defs), self.tag))
            self.vmcount += 1

    tag = None
    vmcount = 0

    def wait_tag(self, tag):
        idx = max((i for i, (_, t) in enumerate(self.vm) if t == tag), default=-1)
        if idx >= 0:
            n = min(len(self.vm) - 1 - idx, 63)
            self("s_waitcnt vmcnt(%d)" % n)

    def forget(self):
        self.lg, self.vm = [], []

    def __call__(self, text):
        for ln in text.strip("\n").split("\n"):
            s = ln.strip()
            if not s:
                continue
            if s.startswith(";"):
                self.items.append(("c", s))
            elif s.endswith(":") and " " not in s:
                self.items.append(("l", s[:-1]))
            elif s.startswith("."):
                self.items.append(("c", s))
            else:
                self._track(s)
                self.items.append(("i", s))

    def newlabel(self, base):
        self.uid += 1
        return f"{base}_{self.uid}"

    def finish(self, window=24):
        seq = []
        for kind, t in self.items:
            seq.append([kind, t, Ins(t) if kind == "i" else None])
        labels = {t: i for i, (k, t, _) in enumerate(seq) if k == "l"}
        pads = [0] * len(seq)

        def preds(i):
            out = []
            j = i - 1
            while j >= 0:
                k, t, ins = seq[j]
                if k == "l":
                    for b, (kb, tb, ib) in enumerate(seq):
                        if kb == "i" and ib.op.startswith(("s_cbranch", "s_branch")) and ib.ops[0] == t:
                            out.append(b)
                    j -= 1
                    continue
                if k == "c":
                    j -= 1
                    continue
                if not (ins.op == "s_branch" or ins.op == "s_endpgm"):
                    out.append(j)
                break
            return out

        predc = {}

        def getp(i):
            if i not in predc:
                predc[i] = preds(i)
            return predc[i]

        changed = True
        while changed:
            changed = False
            for i, (k, t, ins) in enumerate(seq):
                if k != "i" or ins.cls == "nop":
                    continue
                req = 0
                stack = [(p, 0) for p in getp(i)]
                seen = {}
                while stack:
                    p, dist = stack.pop()
                    if dist >= window:
                        continue
                    if p in seen and seen[p] <= dist:
                        continue
                    seen[p] = dist
                    pi = seq[p][2]
                    r = need(pi, ins) - dist
                    if r > req:
                        req = r
                    nd = dist + pi.states + pads[p]
                    for pp in getp(p):
                        stack.append((pp, nd))
                have = pads[i]
                if req > have:
                    pads[i] = req
                    changed = True
        out = []
        nn = 0
        for i, (k, t, ins) in enumerate(seq):
            if k == "l":
                out.append(t + ":")
            elif k == "c":
                out.append("  " + t)
            else:
                p = pads[i]
                while p > 0:
                    q = min(p, 16)
                    out.append(f"  s_nop {q - 1}")
                    nn += 1
                    p -= q
                out.append("  " + t)
        self.nops = nn
        return "\n".join(out) + "\n"
```

```python
import sys
import struct
import argparse
from asmlib import Asm

KNAME = "gated_mix__ssm_conv_s4__dense_activation_mish__prompt_kernel"

WS_FLAGS = 0x0
FL_UT = 0x0
FL_H = 0x400
FL_AT = 0xC00
FL_BYTES = 0x1000
WS_G = 0x2000
WS_UT = 0x100000
WS_AT = 0x300000
WS_H = 0x500000
WS_DBG = 0x1000000
WS_BYTES = 0x10000000

SLOT = 32768
TB = 98304
TROW = 544
TCH = 57 * TROW
TT = TB
TTP = 144
KC = TB + 2 * TCH
KCH = 1552
CV = 131072
CPY = 4160
UB = CV + 4 * CPY
UCH = 4576
LDS_BYTES = 163840

S_U, S_ARE, S_AIM, S_BRE, S_BIM, S_CRE, S_CIM, S_LDT, S_DSK = 4, 6, 8, 10, 12, 14, 16, 18, 20
S_W1, S_B1, S_W2, S_GW, S_OUT, S_DBG, S_WS = 24, 26, 28, 30, 32, 34, 36
R_X, R_W1, R_W2, R_WS, R_OUT, R_DBG = 40, 44, 48, 52, 56, 60
S_WAVE, S_XCD, S_J, S_RB, S_FS, S_ROT = 64, 65, 66, 67, 68, 69
S_T0 = 70

V_LANE = 1


def f32(x):
    return "0x%08x" % struct.unpack("<I", struct.pack("<f", x))[0]


LOG2E = f32(1.4426950408889634)
LOG2E_LO = f32(1.4426950408889634 - struct.unpack("<f", struct.pack("<f", 1.4426950408889634))[0])
LN2 = f32(0.6931471805599453)
INV2PI = f32(0.15915494309189535)


def vr(a, n):
    return f"v[{a}:{a + n - 1}]" if n > 1 else f"v{a}"


def ar(a, n):
    return f"a[{a}:{a + n - 1}]" if n > 1 else f"a{a}"


def sr(a, n=2):
    return f"s[{a}:{a + n - 1}]"


def srd(k, s, ptr, nbytes):
    k(f"""s_mov_b32 s{s}, s{ptr}
s_and_b32 s{s + 1}, s{ptr + 1}, 0xffff
s_mov_b32 s{s + 2}, {nbytes}
s_mov_b32 s{s + 3}, 0x00020000""")


def prologue(k, end_label):
    k(f"""s_cmp_ge_u32 s2, 256
s_cbranch_scc1 {end_label}
s_load_dwordx16 s[4:19], s[0:1], 0
s_load_dwordx16 s[20:35], s[0:1], 64
s_load_dwordx2 s[36:37], s[0:1], 128
v_lshrrev_b32 v2, 6, v0
v_and_b32 v{V_LANE}, 63, v0
s_and_b32 s{S_XCD}, s2, 7
v_readfirstlane_b32 s{S_WAVE}, v2
s_lshr_b32 s{S_J}, s2, 3
s_waitcnt lgkmcnt(0)""")
    srd(k, R_X, S_U, 2048 * 512 * 2)
    srd(k, R_W1, S_W1, 512 * 1792 * 2)
    srd(k, R_W2, S_W2, 1792 * 512 * 2)
    srd(k, R_WS, S_WS, WS_BYTES)
    srd(k, R_OUT, S_OUT, 2048 * 512 * 2)
    srd(k, R_DBG, S_DBG, 256)


def phase_t_load(k, V):
    t = S_T0
    k(f"""; ---- T: load a 64 x 64 tile of u
v_lshrrev_b32 v{V + 8}, 3, v{V_LANE}
v_lshlrev_b32 v{V + 8}, 10, v{V + 8}
v_and_b32 v{V + 9}, 7, v{V_LANE}
v_lshl_add_u32 v{V + 8}, v{V + 9}, 4, v{V + 8}
s_lshl_b32 s{t}, s{S_J}, 6
s_lshl_b32 s{t + 1}, s{S_WAVE}, 4
s_add_u32 s{t}, s{t}, s{t + 1}
s_lshl_b32 s{t}, s{t}, 10
s_lshl_b32 s{t + 1}, s{S_XCD}, 7
s_add_u32 s{t}, s{t}, s{t + 1}
s_add_u32 s{t + 1}, s{t}, 8192
buffer_load_dwordx4 {vr(V, 4)}, v{V + 8}, {sr(R_X, 4)}, s{t} offen
buffer_load_dwordx4 {vr(V + 4, 4)}, v{V + 8}, {sr(R_X, 4)}, s{t + 1} offen""")


def phase_t_rest(k, V):
    t = S_T0
    a, b = V + 8, V + 9
    k(f"""; ---- T: transpose through LDS and store
v_lshrrev_b32 v{a}, 3, v{V_LANE}
v_mul_u32_u24 v{a}, {TTP}, v{a}
v_and_b32 v{b}, 7, v{V_LANE}
v_lshl_add_u32 v{a}, v{b}, 4, v{a}
s_mul_i32 s{t}, s{S_WAVE}, {16 * TTP}
s_add_u32 s{t}, s{t}, {TT}
v_add_u32 v{a}, s{t}, v{a}
ds_write_b128 v{a}, {vr(V, 4)}
ds_write_b128 v{a}, {vr(V + 4, 4)} offset:{8 * TTP}
v_lshrrev_b32 v{a}, 4, v{V_LANE}
v_lshlrev_b32 v{a}, 3, v{a}
v_bfe_u32 v{b}, v{V_LANE}, 2, 2
v_add_u32 v{a}, v{a}, v{b}
v_mul_u32_u24 v{a}, {TTP}, v{a}
v_and_b32 v{b}, 3, v{V_LANE}
v_lshl_add_u32 v{a}, v{b}, 3, v{a}
s_lshl_b32 s{t}, s{S_WAVE}, 5
s_add_u32 s{t}, s{t}, {TT}
v_add_u32 v{a}, s{t}, v{a}
s_waitcnt lgkmcnt(0)
s_barrier
ds_read_b64_tr_b16 {vr(V, 2)}, v{a}
ds_read_b64_tr_b16 {vr(V + 2, 2)}, v{a} offset:{4 * TTP}
ds_read_b64_tr_b16 {vr(V + 4, 2)}, v{a} offset:{32 * TTP}
ds_read_b64_tr_b16 {vr(V + 6, 2)}, v{a} offset:{36 * TTP}
v_and_b32 v{b}, 15, v{V_LANE}
v_lshlrev_b32 v{b}, 12, v{b}
v_lshrrev_b32 v{a}, 4, v{V_LANE}
v_lshl_add_u32 v{b}, v{a}, 4, v{b}
s_lshl_b32 s{t}, s{S_XCD}, 6
s_lshl_b32 s{t + 1}, s{S_WAVE}, 4
s_add_u32 s{t}, s{t}, s{t + 1}
s_lshl_b32 s{t}, s{t}, 12
s_lshl_b32 s{t + 1}, s{S_J}, 7
s_add_u32 s{t}, s{t}, s{t + 1}
s_add_u32 s{t}, s{t}, {WS_UT}""")
    k.tag = "tstore"
    k(f"""buffer_store_dwordx4 {vr(V, 4)}, v{b}, {sr(R_WS, 4)}, s{t} offen sc1
buffer_store_dwordx4 {vr(V + 4, 4)}, v{b}, {sr(R_WS, 4)}, s{t} offen offset:64 sc1""")
    k.tag = None


def kslot(lt):
    if lt < 256:
        a, rem = divmod(lt, 128); b, d = divmod(rem, 8); tile, row = 0, 8 * a + d
    elif lt < 512:
        a, rem = divmod(lt - 256, 128); b, d = divmod(rem, 8); tile, row = 1, 4 * a + d // 2
    elif lt < 1024:
        a, rem = divmod(lt - 512, 128); b, d = divmod(rem, 8); tile, row = 1, 8 + 2 * a + d // 4
    else:
        a, rem = divmod(lt - 1024, 128); b = rem // 8; tile, row = 2, a
    g, r = divmod(row, 4)
    return tile * 256 + (16 * g + b) * 4 + r


def bf16_round_int(l):
    u = struct.unpack("<I", struct.pack("<f", float(l)))[0]
    u = (u + 0x7FFF + ((u >> 16) & 1)) & 0xFFFF0000
    return int(struct.unpack("<f", struct.pack("<I", u))[0])


def gather_table():
    tab = []
    for p in range(2064):
        l = 2047 - p
        tab.append(2 * kslot(bf16_round_int(l)) if l >= 0 else 1536)
    return tab


def phase_k_load(k, V):
    t = S_T0
    k(f"""; ---- K: parameter loads
s_lshl_b32 s{t}, s2, 2
s_add_u32 s{t}, s{t}, s{S_WAVE}
s_lshl_b32 s{t}, s{t}, 7
v_lshl_add_u32 v{V + 13}, v{V_LANE}, 1, s{t}""")
    for i, s in enumerate((S_ARE, S_AIM, S_BRE, S_BIM, S_CRE, S_CIM)):
        k(f"global_load_ushort v{V + i}, v{V + 13}, {sr(s)}")
    k(f"""s_lshr_b32 s{t}, s{S_WAVE}, 1
s_lshl_b32 s{t + 1}, s2, 1
s_add_u32 s{t}, s{t}, s{t + 1}
s_lshl_b32 s{t}, s{t}, 1
v_mov_b32 v{V + 13}, s{t}
global_load_ushort v{V + 6}, v{V + 13}, {sr(S_LDT)}
global_load_ushort v{V + 7}, v{V + 13}, {sr(S_DSK)}
s_getpc_b64 {sr(t + 2)}
L_pc_{k.kname}:
s_add_u32 s{t + 2}, s{t + 2}, L_gtab-L_pc_{k.kname}
s_addc_u32 s{t + 3}, s{t + 3}, 0
v_lshlrev_b32 v{V + 13}, 4, v0
global_load_dwordx4 {vr(V + 8, 4)}, v{V + 13}, {sr(t + 2)}
global_load_ushort v{V + 12}, v{V + 13}, {sr(t + 2)} offset:16""")


def cmul(k, d, a, b):
    tmp = k.ctmp
    k(f"v_pk_mul_f32 {vr(tmp, 2)}, {vr(a, 2)}, {vr(b, 2)} op_sel_hi:[0,1]")
    k(f"v_pk_fma_f32 {vr(d, 2)}, {vr(a, 2)}, {vr(b, 2)}, {vr(tmp, 2)} op_sel:[1,1,0] op_sel_hi:[1,0,1] neg_lo:[0,1,0]")


def phase_k_tables(k, V, W):
    t = S_T0
    are, aim, bre, bim, cre, cim, ldt, dsk = range(V, V + 8)
    assert W % 2 == 0
    lr, an = W, W + 1
    w1, w2, w4, w8, w128 = W + 2, W + 4, W + 6, W + 8, W + 10
    S, T, Y = W + 12, W + 14, W + 16
    tmpA, tmpB = W + 18, W + 20
    x0, x1, x2, x3 = W + 22, W + 23, W + 24, W + 25
    cv0, cv1 = W + 26, W + 27
    adr = W + 28
    k(f"""; ---- K: per-mode constants
v_lshlrev_b32 v{ldt}, 16, v{ldt}
v_mul_f32 v{x0}, {LOG2E}, v{ldt}
s_mov_b32 s{t}, {LOG2E}
v_fma_f32 v{x1}, v{ldt}, s{t}, -v{x0}
v_fmac_f32 v{x1}, {LOG2E_LO}, v{ldt}
v_exp_f32 v{x0}, v{x0}
v_mul_f32 v{x1}, {LN2}, v{x1}
v_fma_f32 v{x0}, v{x0}, v{x1}, v{x0}
v_cvt_pk_bf16_f32 v{x0}, v{x0}, v{x0}
v_lshlrev_b32 v{x0}, 16, v{x0}""")
    for r in (are, aim, bre, bim, cre, cim, dsk):
        k(f"v_lshlrev_b32 v{r}, 16, v{r}")
    k(f"""v_mul_f32 v{lr}, v{x0}, v{are}
v_mul_f32 v{an}, v{x0}, v{aim}
v_mul_f32 v{lr}, {LOG2E}, v{lr}
v_mul_f32 v{an}, {INV2PI}, v{an}
v_mul_f32 v{bre}, v{x0}, v{bre}
v_mul_f32 v{bim}, v{x0}, v{bim}
v_mul_f32 v{S}, v{cre}, v{bre}
v_mul_f32 v{S + 1}, v{cre}, v{bim}
v_fma_f32 v{S}, -v{cim}, v{bim}, v{S}
v_fma_f32 v{S + 1}, v{cim}, v{bre}, v{S + 1}""")

    def cexp(d, m):
        if m == 1:
            k(f"v_fract_f32 v{x1}, v{an}")
            k(f"v_exp_f32 v{x0}, v{lr}")
        else:
            k(f"v_mul_f32 v{x1}, {f32(m)}, v{an}")
            k(f"v_mul_f32 v{x0}, {f32(m)}, v{lr}")
            k(f"v_fract_f32 v{x1}, v{x1}")
            k(f"v_exp_f32 v{x0}, v{x0}")
        k(f"v_cos_f32 v{x2}, v{x1}")
        k(f"v_sin_f32 v{x3}, v{x1}")
        k(f"v_mul_f32 v{d}, v{x0}, v{x2}")
        k(f"v_mul_f32 v{d + 1}, v{x0}, v{x3}")

    cexp(w1, 1)
    cexp(w8, 8)
    cexp(w128, 128)
    k.ctmp = tmpA
    cmul(k, w2, w1, w1)
    cmul(k, w4, w2, w2)
    k(f"""s_lshr_b32 s{t}, s{S_WAVE}, 1
s_mul_i32 s{t}, s{t}, {TCH}
s_and_b32 s{t + 1}, s{S_WAVE}, 1
s_lshl_b32 s{t + 1}, s{t + 1}, 8
s_add_u32 s{t}, s{t}, s{t + 1}
s_add_u32 s{t}, s{t}, {TB}
v_lshl_add_u32 v{adr}, v{V_LANE}, 2, s{t}""")
    k("s_waitcnt lgkmcnt(0)\ns_barrier")

    tog = [0]

    def put(row, pair, neg):
        c = cv0 if tog[0] == 0 else cv1
        tog[0] ^= 1
        k(f"v_cvt_pk_bf16_f32 v{c}, v{pair}, {'-' if neg else ''}v{pair + 1}")
        k(f"ds_write_b32 v{adr}, v{c} offset:{row * TROW}")

    xo = []
    xo.append(lambda: put(0, S, False))
    for a in range(0, 17):
        if a > 0:
            if a <= 1:
                row = 8 * a
            elif a <= 3:
                row = 16 + 4 * (a - 2)
            elif a <= 7:
                row = 24 + 2 * (a - 4)
            else:
                row = 32 + (a - 8)
            xo.append(lambda row=row: (setattr(k, "ctmp", tmpA), cmul(k, S, S, w128), put(row, S, False)))
        if a <= 1:
            base, n, mul = 8 * a, 7, w1
        elif a <= 3:
            base, n, mul = 16 + 4 * (a - 2), 3, w2
        elif a <= 7:
            base, n, mul = 24 + 2 * (a - 4), 1, w4
        else:
            n = 0
        for j in range(n):
            src = S if j == 0 else T
            xo.append(lambda src=src, mul=mul, row=base + 1 + j: (setattr(k, "ctmp", tmpA), cmul(k, T, src, mul), put(row, T, False)))
    yo = []
    yo.append(lambda: (k(f"v_mov_b32 v{Y}, 1.0\nv_mov_b32 v{Y + 1}, 0"), put(41, Y, True)))
    yo.append(lambda: put(42, w8, True))
    for b in range(2, 16):
        src = w8 if b == 2 else Y
        yo.append(lambda src=src, b=b: (setattr(k, "ctmp", tmpB), cmul(k, Y, src, w8), put(41 + b, Y, True)))
    k("; ---- K: tables")
    while xo or yo:
        if xo:
            xo.pop(0)()
        if xo:
            xo.pop(0)()
        if yo:
            yo.pop(0)()
    k("s_waitcnt lgkmcnt(0)\ns_barrier")


def phase_k_mfma(k, V, W):
    t = S_T0
    dsk = V + 7
    a1, a2, bb = W, W + 1, W + 2
    acc1, acc2 = W + 4, W + 8
    fr = W + 12
    k(f"""; ---- K: K = X * Y^T
v_and_b32 v{a1}, 15, v{V_LANE}
v_mul_u32_u24 v{a1}, {TROW}, v{a1}
v_lshrrev_b32 v{a2}, 4, v{V_LANE}
v_lshl_add_u32 v{a1}, v{a2}, 4, v{a1}
s_lshr_b32 s{t}, s{S_WAVE}, 1
s_mul_i32 s{t}, s{t}, {TCH}
s_add_u32 s{t}, s{t}, {TB}
v_add_u32 v{bb}, s{t}, v{a1}
v_add_u32 v{a2}, {16 * TROW}, v{bb}
s_and_b32 s{t + 1}, s{S_WAVE}, 1
s_mul_i32 s{t + 1}, s{t + 1}, {32 * TROW}
v_add_u32 v{a1}, s{t + 1}, v{bb}""")
    for i in range(8):
        k(f"v_mov_b32 v{acc1 + i}, 0")
    for ks in range(8):
        f = fr + 12 * (ks % 3)
        k(f"ds_read_b128 {vr(f, 4)}, v{a1} offset:{64 * ks}")
        k(f"ds_read_b128 {vr(f + 4, 4)}, v{a2} offset:{64 * ks}")
        k(f"ds_read_b128 {vr(f + 8, 4)}, v{bb} offset:{41 * TROW + 64 * ks}")
        if ks >= 2:
            g = fr + 12 * ((ks - 2) % 3)
            k(f"v_mfma_f32_16x16x32_bf16 {vr(acc1, 4)}, {vr(g, 4)}, {vr(g + 8, 4)}, {vr(acc1, 4)}")
            k(f"v_mfma_f32_16x16x32_bf16 {vr(acc2, 4)}, {vr(g + 4, 4)}, {vr(g + 8, 4)}, {vr(acc2, 4)}")
    for ks in (6, 7):
        g = fr + 12 * (ks % 3)
        k(f"v_mfma_f32_16x16x32_bf16 {vr(acc1, 4)}, {vr(g, 4)}, {vr(g + 8, 4)}, {vr(acc1, 4)}")
        k(f"v_mfma_f32_16x16x32_bf16 {vr(acc2, 4)}, {vr(g + 4, 4)}, {vr(g + 8, 4)}, {vr(acc2, 4)}")
    x = fr
    k(f"""; Dskip joins lag 0 (tile 0, lane 0, register 0)
s_and_b32 s{t + 1}, s{S_WAVE}, 1
v_or_b32 v{x}, s{t + 1}, v{V_LANE}
v_cmp_eq_u32 vcc, 0, v{x}
v_cndmask_b32 v{x}, 0, v{dsk}, vcc
s_lshr_b32 s{t}, s{S_WAVE}, 1
s_mul_i32 s{t}, s{t}, {KCH}
s_add_u32 s{t}, s{t}, {KC}
v_lshl_add_u32 v{x + 1}, v{V_LANE}, 3, s{t}
s_lshl_b32 s{t + 1}, s{t + 1}, 10
v_add_u32 v{x + 2}, s{t + 1}, v{x + 1}
v_mov_b32 v{x + 8}, 0
v_mov_b32 v{x + 3}, s{t}
v_add_f32 v{acc1}, v{acc1}, v{x}
v_cvt_pk_bf16_f32 v{x + 4}, v{acc1}, v{acc1 + 1}
v_cvt_pk_bf16_f32 v{x + 5}, v{acc1 + 2}, v{acc1 + 3}
v_cvt_pk_bf16_f32 v{x + 6}, v{acc2}, v{acc2 + 1}
v_cvt_pk_bf16_f32 v{x + 7}, v{acc2 + 2}, v{acc2 + 3}
ds_write_b64 v{x + 2}, {vr(x + 4, 2)}
ds_write_b64 v{x + 1}, {vr(x + 6, 2)} offset:512
ds_write_b32 v{x + 3}, v{x + 8} offset:1536
s_waitcnt lgkmcnt(0)
s_barrier""")


def phase_k_expand(k, V, W):
    gi = V + 8
    ix = W
    d = W + 10
    adr = W + 50
    k(f"v_mov_b32 v{ix + 9}, {KC}")
    for j in range(4):
        k(f"v_add_u32_sdwa v{ix + 2 * j}, v{ix + 9}, v{gi + j} dst_sel:DWORD dst_unused:UNUSED_PAD src0_sel:DWORD src1_sel:WORD_0")
        k(f"v_add_u32_sdwa v{ix + 2 * j + 1}, v{ix + 9}, v{gi + j} dst_sel:DWORD dst_unused:UNUSED_PAD src0_sel:DWORD src1_sel:WORD_1")
    k(f"v_add_u32 v{ix + 8}, v{ix + 9}, v{V + 12}")
    k(f"v_lshlrev_b32 v{adr}, 4, v0")
    for ch in range(2):
        dd = d + 18 * ch
        for j in range(9):
            k(f"ds_read_u16 v{dd + j}, v{ix + j} offset:{ch * KCH}")
    k(f"v_add_u32 v{adr}, {CV}, v{adr}")
    for ch in range(2):
        dd = d + 18 * ch
        pk = dd + 10
        assert pk % 2 == 0
        for j in range(4):
            k(f"v_lshl_or_b32 v{pk + j}, v{dd + 2 * j + 1}, 16, v{dd + 2 * j}")
        for j in range(4):
            k(f"v_lshl_or_b32 v{pk + 4 + j}, v{dd + 2 * j + 2}, 16, v{dd + 2 * j + 1}")
        k(f"ds_write_b128 v{adr}, {vr(pk, 4)} offset:{ch * 2 * CPY}")
        k(f"ds_write_b128 v{adr}, {vr(pk + 4, 4)} offset:{ch * 2 * CPY + CPY}")
    z = d + 36
    a, b = ix, ix + 1
    assert z % 2 == 0
    k(f"""v_mov_b32 v{z}, 0
v_mov_b32 v{z + 1}, 0
v_mov_b32 v{z + 2}, 0
v_mov_b32 v{z + 3}, 0
v_lshrrev_b32 v{a}, 2, v0
v_mul_u32_u24 v{a}, {CPY}, v{a}
v_and_b32 v{b}, 3, v0
v_lshl_add_u32 v{a}, v{b}, 4, v{a}
v_add_u32 v{a}, {CV + 4096}, v{a}
v_subrev_u32 v{b}, 16, v0
v_cmp_le_u32 vcc, 30, v{b}
v_cndmask_b32 v{ix + 2}, 0, 1, vcc
v_mul_u32_u24 v{ix + 2}, {UCH - 480}, v{ix + 2}
v_lshl_add_u32 v{b}, v{b}, 4, v{ix + 2}
v_add_u32 v{b}, {UB}, v{b}
v_cmp_gt_u32 vcc, 16, v0
v_cndmask_b32 v{a}, v{b}, v{a}, vcc
v_cmp_gt_u32 vcc, 76, v0
s_and_saveexec_b64 {sr(S_T0)}, vcc
ds_write_b128 v{a}, {vr(z, 4)}
s_mov_b64 exec, {sr(S_T0)}""")


G1_ACC = 128
G1_FR = 192
G1_AD = 224


def g1_role(k):
    t = S_T0
    k(f"""; ---- role in GEMM1
s_mul_i32 s{t}, s{S_J}, 37
s_lshr_b32 s{t}, s{t}, 8
s_mul_i32 s{t + 1}, s{t}, 7
s_sub_u32 s{t + 1}, s{S_J}, s{t + 1}
s_lshr_b32 s{S_RB}, s{S_XCD}, 1
s_lshl_b32 s{S_RB}, s{S_RB}, 2
s_add_u32 s{S_RB}, s{S_RB}, s{t}
s_and_b32 s{S_FS}, s{S_XCD}, 1
s_mul_i32 s{S_FS}, s{S_FS}, 7
s_add_u32 s{S_FS}, s{S_FS}, s{t + 1}
s_lshl_b32 s{S_ROT}, s{t}, 1
s_add_u32 s{S_ROT}, s{S_ROT}, s{t + 1}
s_and_b32 s{S_ROT}, s{S_ROT}, 7""")


S_G1X, S_G1W, S_G1C, S_G1SL = 90, 91, 92, 93
S_G1RD = 94


def g1_setup(k, B):
    t = S_T0
    xa, xb, wa, tmp = G1_AD, G1_AD + 1, G1_AD + 2, G1_AD + 3
    k(f"""; ---- G1: DMA addresses
v_lshrrev_b32 v{tmp}, 3, v{V_LANE}
v_lshrrev_b32 v{tmp + 1}, 1, v{tmp}
v_and_b32 v{tmp + 2}, 7, v{V_LANE}
v_xor_b32 v{tmp + 2}, v{tmp + 2}, v{tmp + 1}
v_lshlrev_b32 v{tmp}, 10, v{tmp}
v_lshl_add_u32 v{xa}, v{tmp + 2}, 4, v{tmp}
v_xor_b32 v{xb}, 64, v{xa}
v_lshrrev_b32 v{tmp}, 4, v{V_LANE}
v_and_b32 v{tmp + 1}, 15, v{V_LANE}
v_lshlrev_b32 v{tmp + 2}, 2, v{tmp}
v_xor_b32 v{tmp + 1}, v{tmp + 1}, v{tmp + 2}
v_mul_u32_u24 v{tmp}, 3584, v{tmp}
v_lshl_add_u32 v{wa}, v{tmp + 1}, 4, v{tmp}
s_lshl_b32 s{t}, s{S_RB}, 7
s_lshl_b32 s{t + 1}, s{S_WAVE}, 5
s_add_u32 s{t}, s{t}, s{t + 1}
s_lshl_b32 s{S_G1X}, s{t}, 10
s_lshl_b32 s{t}, s{S_FS}, 8
s_mul_i32 s{t + 1}, s{S_WAVE}, {16 * 3584}
s_add_u32 s{S_G1W}, s{t}, s{t + 1}
; bias
s_lshl_b32 s{t}, s{S_FS}, 7
s_and_b32 s{t + 1}, s{S_WAVE}, 1
s_lshl_b32 s{t + 1}, s{t + 1}, 6
s_add_u32 s{t}, s{t}, s{t + 1}
s_lshl_b32 s{t}, s{t}, 1
v_lshrrev_b32 v{tmp}, 5, v{V_LANE}
v_lshl_add_u32 v{tmp}, v{tmp}, 3, s{t}""")
    for fb in range(2):
        for q in range(4):
            k(f"global_load_dwordx2 {vr(B + 2 * (4 * fb + q), 2)}, v{tmp}, {sr(S_B1)} offset:{64 * fb + 16 * q}")


def g1_issue(k, cexpr_s):
    t = S_T0
    xa, xb, wa = G1_AD, G1_AD + 1, G1_AD + 2
    k(f"""s_add_u32 s{t}, s{cexpr_s}, s{S_ROT}
s_and_b32 s{t}, s{t}, 7
s_lshl_b32 s{t + 1}, s{t}, 7
s_add_u32 s{t + 1}, s{t + 1}, s{S_G1X}
s_mul_i32 s{t + 2}, s{t}, {64 * 3584}
s_add_u32 s{t + 2}, s{t + 2}, s{S_G1W}
s_lshl_b32 s{t + 3}, s{S_WAVE}, 12
s_add_u32 s{t + 3}, s{t + 3}, s{S_G1SL}
s_mov_b32 m0, s{t + 3}""")
    for i in range(4):
        k(f"buffer_load_dwordx4 v{xa if i % 2 == 0 else xb}, {sr(R_X, 4)}, s{t + 1} offen lds")
        if i < 3:
            k(f"s_add_u32 m0, m0, 1024\ns_add_u32 s{t + 1}, s{t + 1}, 8192")
    k(f"s_add_u32 m0, s{t + 3}, 16384")
    for i in range(4):
        k(f"buffer_load_dwordx4 v{wa}, {sr(R_W1, 4)}, s{t + 2} offen lds")
        if i < 3:
            k(f"s_add_u32 m0, m0, 1024\ns_add_u32 s{t + 2}, s{t + 2}, {4 * 3584}")


def g1_prologue_dma(k):
    k(f"s_mov_b32 s{S_G1C}, 0\ns_mov_b32 s{S_G1SL}, 0")
    g1_issue(k, S_G1C)
    k(f"s_mov_b32 s{S_G1C}, 1\ns_mov_b32 s{S_G1SL}, {SLOT}")
    g1_issue(k, S_G1C)


def g1_bias(k, B):
    k("; ---- G1: accumulators start from the bias")
    for fb in range(2):
        for q in range(4):
            for d in range(2):
                src = B + 2 * (4 * fb + q) + d
                for tb in range(2):
                    a = G1_ACC + (fb * 2 + tb) * 16 + 4 * q + 2 * d
                    k(f"v_lshlrev_b32 v{a}, 16, v{src}")
                    k(f"v_and_b32 v{a + 1}, 0xffff0000, v{src}")


def g1_main(k, after_c1=None):
    t = S_T0
    xr = G1_AD + 4
    wr = G1_AD + 8
    xc = G1_AD + 10
    wc = G1_AD + 14
    tmp = G1_AD + 16
    k(f"""; ---- G1: LDS read addresses
v_and_b32 v{tmp}, 31, v{V_LANE}
v_bfe_u32 v{tmp + 1}, v{V_LANE}, 1, 3
v_bfe_u32 v{tmp + 3}, v{V_LANE}, 4, 1
v_lshrrev_b32 v{tmp + 2}, 5, v{V_LANE}
v_lshrrev_b32 v{tmp + 1}, 1, v{tmp}
v_and_b32 v{tmp + 1}, 7, v{tmp + 1}
v_xor_b32 v{tmp + 1}, v{tmp + 1}, v{tmp + 2}
s_lshr_b32 s{t}, s{S_WAVE}, 1
s_lshl_b32 s{t}, s{t}, 6
v_add_u32 v{tmp}, s{t}, v{tmp}
v_lshlrev_b32 v{tmp}, 7, v{tmp}
v_lshl_add_u32 v{xr}, v{tmp + 1}, 4, v{tmp}
v_xor_b32 v{xr + 1}, 32, v{xr}
v_xor_b32 v{xr + 2}, 64, v{xr}
v_xor_b32 v{xr + 3}, 96, v{xr}
v_bfe_u32 v{tmp}, v{V_LANE}, 2, 2
v_lshl_add_u32 v{tmp + 1}, v{tmp + 2}, 3, v{tmp}
v_lshlrev_b32 v{tmp + 1}, 8, v{tmp + 1}
s_and_b32 s{t}, s{S_WAVE}, 1
s_lshl_b32 s{t}, s{t}, 1
v_xor_b32 v{tmp}, s{t}, v{tmp}
v_lshlrev_b32 v{tmp}, 2, v{tmp}
v_lshl_add_u32 v{tmp}, v{tmp + 3}, 1, v{tmp}
v_bfe_u32 v{tmp + 2}, v{V_LANE}, 1, 1
v_add_u32 v{tmp}, v{tmp}, v{tmp + 2}
v_lshl_add_u32 v{tmp + 1}, v{tmp}, 4, v{tmp + 1}
v_and_b32 v{tmp + 2}, 1, v{V_LANE}
v_lshl_add_u32 v{tmp + 1}, v{tmp + 2}, 3, v{tmp + 1}
v_add_u32 v{wr}, 16384, v{tmp + 1}
v_xor_b32 v{wr + 1}, 64, v{wr}
s_mov_b32 s{S_G1C}, 0
s_mov_b32 s{S_G1RD}, 0
s_mov_b32 s{S_G1SL}, {2 * SLOT}""")
    loop, last, nodma, done = (k.newlabel(x) for x in ("L_g1", "L_g1_last", "L_g1_nodma", "L_g1_done"))
    k.auto = False

    def reads(ks, st):
        f = G1_FR + 16 * st
        for fb in range(2):
            for j in range(2):
                k(f"ds_read_b64_tr_b16 {vr(f + 4 * fb + 2 * j, 2)}, v{wc + fb} offset:{4096 * ks + 1024 * j}")
        for tb in range(2):
            k(f"ds_read_b128 {vr(f + 8 + 4 * tb, 4)}, v{xc + ks} offset:{4096 * tb}")

    def mfmas(st):
        f = G1_FR + 16 * st
        for fb in range(2):
            for tb in range(2):
                a = G1_ACC + (fb * 2 + tb) * 16
                k(f"v_mfma_f32_32x32x16_bf16 {vr(a, 16)}, {vr(f + 4 * fb, 4)}, {vr(f + 8 + 4 * tb, 4)}, {vr(a, 16)}")

    wjoin = k.newlabel("L_g1_w")
    k(f"""{loop}:
s_cmp_eq_u32 s{S_G1C}, 7
s_cbranch_scc1 {last}
s_waitcnt vmcnt(8)
s_branch {wjoin}
{last}:
s_waitcnt vmcnt(0)
{wjoin}:
s_barrier""")
    for i in range(4):
        k(f"v_add_u32 v{xc + i}, s{S_G1RD}, v{xr + i}")
    for i in range(2):
        k(f"v_add_u32 v{wc + i}, s{S_G1RD}, v{wr + i}")
    reads(0, 0)
    if after_c1:
        after_c1(k)
    k(f"""s_cmp_ge_u32 s{S_G1C}, 6
s_cbranch_scc1 {nodma}
s_add_u32 s{t + 4}, s{S_G1C}, 2""")
    g1_issue(k, t + 4)
    k(f"""s_add_u32 s{S_G1SL}, s{S_G1SL}, {SLOT}
s_cmp_eq_u32 s{S_G1SL}, {3 * SLOT}
s_cselect_b32 s{S_G1SL}, 0, s{S_G1SL}
{nodma}:""")
    for ks in range(4):
        if ks < 3:
            reads(ks + 1, (ks + 1) % 2)
            k("s_waitcnt lgkmcnt(6)")
        else:
            k("s_waitcnt lgkmcnt(0)")
        mfmas(ks % 2)
    k(f"""s_add_u32 s{S_G1RD}, s{S_G1RD}, {SLOT}
s_cmp_eq_u32 s{S_G1RD}, {3 * SLOT}
s_cselect_b32 s{S_G1RD}, 0, s{S_G1RD}
s_add_u32 s{S_G1C}, s{S_G1C}, 1
s_cmp_lt_u32 s{S_G1C}, 8
s_cbranch_scc1 {loop}""")
    k.forget()
    k.auto = True


def g1_epilogue(k):
    t = S_T0
    T = G1_FR
    P = G1_FR + 16
    adr = G1_AD
    k(f"""; ---- G1: mish and store
s_mov_b32 s{t + 6}, {LOG2E}
s_mov_b32 s{t + 7}, {LOG2E}
s_lshl_b32 s{t}, s{S_RB}, 2
s_and_b32 s{t + 1}, s{S_WAVE}, 2
s_add_u32 s{t}, s{t}, s{t + 1}
s_mul_i32 s{t}, s{t}, 112
s_lshl_b32 s{t + 1}, s{S_FS}, 3
s_add_u32 s{t}, s{t}, s{t + 1}
s_and_b32 s{t + 1}, s{S_WAVE}, 1
s_lshl_b32 s{t + 1}, s{t + 1}, 2
s_add_u32 s{t}, s{t}, s{t + 1}
s_lshl_b32 s{t}, s{t}, 10
s_add_u32 s{t}, s{t}, {WS_H}
s_add_u32 s{t + 1}, s{t}, {112 * 1024}
v_lshlrev_b32 v{adr}, 4, v{V_LANE}""")
    assert (t + 6) % 2 == 0
    k.tag = "hstore"
    n = 0
    for tb in range(2):
        for fb in range(2):
            for qq in range(2):
                a = G1_ACC + (fb * 2 + tb) * 16 + 8 * qq
                p = P + 4 * (n % 2)
                n += 1
                for j in range(4):
                    k(f"v_pk_mul_f32 {vr(T + 2 * j, 2)}, {vr(a + 2 * j, 2)}, {sr(t + 6)}")
                for j in range(8):
                    k(f"v_exp_f32 v{T + j}, v{T + j}")
                for j in range(4):
                    k(f"v_pk_add_f32 {vr(T + 2 * j, 2)}, {vr(T + 2 * j, 2)}, 1.0 op_sel_hi:[1,0]")
                for j in range(4):
                    k(f"v_pk_fma_f32 {vr(T + 2 * j, 2)}, {vr(T + 2 * j, 2)}, {vr(T + 2 * j, 2)}, 1.0 op_sel_hi:[1,1,0]")
                for j in range(8):
                    k(f"v_rcp_f32 v{T + j}, v{T + j}")
                for j in range(4):
                    k(f"v_pk_fma_f32 {vr(T + 2 * j, 2)}, {vr(T + 2 * j, 2)}, -2.0, 1.0 op_sel_hi:[1,0,0]")
                for j in range(4):
                    k(f"v_pk_mul_f32 {vr(T + 2 * j, 2)}, {vr(T + 2 * j, 2)}, {vr(a + 2 * j, 2)}")
                for j in range(4):
                    k(f"v_cvt_pk_bf16_f32 v{p + j}, v{T + 2 * j}, v{T + 2 * j + 1}")
                k(f"buffer_store_dwordx4 {vr(p, 4)}, v{adr}, {sr(R_WS, 4)}, s{t + tb} offen offset:{(2 * fb + qq) * 1024} sc1")
    k.tag = None


def phase_gate(k):
    t = S_T0
    A, B, acc, tmp = 64, 128, 192, 196
    k(f"""; ---- gate: g = sigmoid(x . gate_w) for 64 rows
s_lshl_b32 s{t}, s{S_XCD}, 2
s_add_u32 s{t}, s{t}, s{S_J}
s_sub_u32 s{t}, s{t}, 28
s_lshl_b32 s{t + 1}, s{t}, 6
s_lshl_b32 s{t + 2}, s{S_WAVE}, 4
s_add_u32 s{t + 1}, s{t + 1}, s{t + 2}
s_lshl_b32 s{t + 2}, s{t + 1}, 10
v_and_b32 v{tmp}, 15, v{V_LANE}
v_lshlrev_b32 v{tmp}, 10, v{tmp}
v_lshrrev_b32 v{tmp + 1}, 4, v{V_LANE}
v_lshlrev_b32 v{tmp + 1}, 4, v{tmp + 1}
v_add_u32 v{tmp}, v{tmp}, v{tmp + 1}""")
    for ks in range(16):
        k(f"global_load_dwordx4 {vr(B + 4 * ks, 4)}, v{tmp + 1}, {sr(S_GW)} offset:{64 * ks}")
        k(f"buffer_load_dwordx4 {vr(A + 4 * ks, 4)}, v{tmp}, {sr(R_X, 4)}, s{t + 2} offen offset:{64 * ks}")
    for i in range(4):
        k(f"v_mov_b32 v{acc + i}, 0")
    for ks in range(16):
        k(f"v_mfma_f32_16x16x32_bf16 {vr(acc, 4)}, {vr(A + 4 * ks, 4)}, {vr(B + 4 * ks, 4)}, {vr(acc, 4)}")
    for i in range(4):
        k(f"v_mul_f32 v{acc + i}, {f32(-1.4426950408889634)}, v{acc + i}")
    for i in range(4):
        k(f"v_exp_f32 v{acc + i}, v{acc + i}")
    for i in range(4):
        k(f"v_add_f32 v{acc + i}, 1.0, v{acc + i}")
    for i in range(4):
        k(f"v_rcp_f32 v{acc + i}, v{acc + i}")
    skip = k.newlabel("L_gate_skip")
    k(f"""s_lshl_b32 s{t + 1}, s{t + 1}, 2
s_add_u32 s{t + 1}, s{t + 1}, {WS_G}
v_and_b32 v{tmp}, 15, v{V_LANE}
v_cmp_eq_u32 vcc, 0, v{tmp}
s_and_saveexec_b64 {sr(t + 4)}, vcc
s_cbranch_execz {skip}
buffer_store_dwordx4 {vr(acc, 4)}, v{tmp + 1}, {sr(R_WS, 4)}, s{t + 1} offen sc1
{skip}:
s_mov_b64 exec, {sr(t + 4)}""")


C_ACC = 64
C_A = 96
C_B = 128
C_AD = 160


def conv_uload(k, V):
    t = S_T0
    k(f"""; ---- C: load u^T rows
s_lshl_b32 s{t}, s2, 1
s_lshr_b32 s{t + 1}, s{S_WAVE}, 1
s_add_u32 s{t}, s{t}, s{t + 1}
s_lshl_b32 s{t}, s{t}, 12
s_and_b32 s{t + 1}, s{S_WAVE}, 1
s_lshl_b32 s{t + 1}, s{t + 1}, 11
s_add_u32 s{t}, s{t}, s{t + 1}
s_add_u32 s{t}, s{t}, {WS_UT}
v_lshlrev_b32 v{V + 8}, 4, v{V_LANE}
buffer_load_dwordx4 {vr(V, 4)}, v{V + 8}, {sr(R_WS, 4)}, s{t} offen sc1
buffer_load_dwordx4 {vr(V + 4, 4)}, v{V + 8}, {sr(R_WS, 4)}, s{t} offen offset:1024 sc1""")


def conv_ustore(k, V):
    t = S_T0
    k(f"""s_lshr_b32 s{t}, s{S_WAVE}, 1
s_mul_i32 s{t}, s{t}, {UCH}
s_and_b32 s{t + 1}, s{S_WAVE}, 1
s_lshl_b32 s{t + 1}, s{t + 1}, 11
s_add_u32 s{t}, s{t}, s{t + 1}
s_add_u32 s{t}, s{t}, {UB + 480}
v_lshl_add_u32 v{V + 8}, v{V_LANE}, 4, s{t}
ds_write_b128 v{V + 8}, {vr(V, 4)}
ds_write_b128 v{V + 8}, {vr(V + 4, 4)} offset:1024
s_waitcnt lgkmcnt(0)
s_barrier""")


def conv_main(k):
    t = S_T0
    aa, ba, tmp = C_AD, C_AD + 8, C_AD + 9
    k(f"""; ---- C: addresses
v_and_b32 v{tmp}, 15, v{V_LANE}
v_lshrrev_b32 v{tmp + 1}, 4, v{V_LANE}
v_lshlrev_b32 v{tmp + 2}, 3, v{tmp + 1}
v_sub_u32 v{tmp + 2}, v{tmp + 2}, v{tmp}
v_add_u32 v{tmp + 2}, 2031, v{tmp + 2}
v_and_b32 v{tmp + 3}, 1, v{tmp + 2}
v_mul_u32_u24 v{tmp + 3}, {CPY - 2}, v{tmp + 3}
v_lshl_add_u32 v{tmp + 2}, v{tmp + 2}, 1, v{tmp + 3}
s_lshr_b32 s{t}, s{S_WAVE}, 1
s_mul_i32 s{t + 1}, s{t}, {2 * CPY}
s_and_b32 s{t + 2}, s{S_WAVE}, 1
s_lshl_b32 s{t + 2}, s{t + 2}, 8
s_add_u32 s{t + 2}, s{t + 2}, 192
s_sub_u32 s{t + 1}, s{t + 1}, s{t + 2}
s_add_u32 s{t + 1}, s{t + 1}, {CV}
v_add_u32 v{aa}, s{t + 1}, v{tmp + 2}""")
    for p in range(1, 8):
        k(f"v_subrev_u32 v{aa + p}, {512 * p}, v{aa}")
    k(f"""s_mul_i32 s{t + 1}, s{t}, {UCH}
s_sub_u32 s{t + 1}, s{t + 1}, s{t + 2}
s_add_u32 s{t + 1}, s{t + 1}, {UB + 448}
v_lshlrev_b32 v{tmp}, 5, v{tmp}
v_lshl_add_u32 v{tmp}, v{tmp + 1}, 4, v{tmp}
v_add_u32 v{ba}, s{t + 1}, v{tmp}""")
    for i in range(32):
        k(f"v_mov_b32 v{C_ACC + i}, 0")

    def rdA(p, qq):
        o = 16 * (3 - qq)
        k(f"ds_read2_b32 {vr(C_A + 4 * p, 2)}, v{aa + p} offset0:{o} offset1:{o + 1}")
        k(f"ds_read2_b32 {vr(C_A + 4 * p + 2, 2)}, v{aa + p} offset0:{o + 2} offset1:{o + 3}")

    def rdB(r, qq):
        k(f"ds_read_b128 {vr(C_B + 4 * r, 4)}, v{ba} offset:{512 * r + 64 * (3 - qq)}")

    k("; ---- C: main")
    for r in range(7, -1, -1):
        rdB(r, 0)
        rdA(7 - r, 0)
    for qq in range(4):
        for p in range(8):
            for c in range(7, p - 1, -1):
                a = C_ACC + 4 * c
                k(f"v_mfma_f32_16x16x32_bf16 {vr(a, 4)}, {vr(C_A + 4 * p, 4)}, {vr(C_B + 4 * (c - p), 4)}, {vr(a, 4)}")
            if qq < 3:
                rdB(7 - p, qq + 1)
                rdA(p, qq + 1)


def conv_finish(k):
    t = S_T0
    adr, rd, F = C_AD, C_AD + 1, C_A
    k(f"""; ---- C: reduce and store
s_waitcnt lgkmcnt(0)
s_barrier
s_lshl_b32 s{t}, s{S_WAVE}, 12
s_add_u32 s{t}, s{t}, {CV}
v_lshl_add_u32 v{adr}, v{V_LANE}, 4, s{t}
s_xor_b32 s{t + 1}, s{S_WAVE}, 1
s_lshl_b32 s{t + 1}, s{t + 1}, 12
s_add_u32 s{t + 1}, s{t + 1}, {CV}
v_lshl_add_u32 v{rd}, v{V_LANE}, 4, s{t + 1}
s_and_b32 s{t + 2}, s{S_WAVE}, 1""")
    odd, join = k.newlabel("L_cv_odd"), k.newlabel("L_cv_join")
    k(f"s_cmp_eq_u32 s{t + 2}, 1\ns_cbranch_scc1 {odd}")
    k.forget()
    for c in range(4):
        k(f"ds_write_b128 v{adr}, {vr(C_ACC + 16 + 4 * c, 4)} offset:{1024 * c}")
    for i in range(16):
        k(f"v_mov_b32 v{F + i}, v{C_ACC + i}")
    k(f"s_branch {join}\n{odd}:")
    for c in range(4):
        k(f"ds_write_b128 v{adr}, {vr(C_ACC + 4 * c, 4)} offset:{1024 * c}")
    for i in range(16):
        k(f"v_mov_b32 v{F + i}, v{C_ACC + 16 + i}")
    k(f"{join}:\ns_waitcnt lgkmcnt(0)\ns_barrier")
    k.forget()
    G = C_B
    for c in range(4):
        k(f"ds_read_b128 {vr(G + 4 * c, 4)}, v{rd} offset:{1024 * c}")
    k(f"""s_lshl_b32 s{t}, s2, 1
s_lshr_b32 s{t + 1}, s{S_WAVE}, 1
s_add_u32 s{t}, s{t}, s{t + 1}
s_lshl_b32 s{t}, s{t}, 12
s_lshl_b32 s{t + 2}, s{t + 2}, 11
s_add_u32 s{t}, s{t}, s{t + 2}
s_add_u32 s{t}, s{t}, {WS_AT}
v_and_b32 v{adr}, 15, v{V_LANE}
v_lshlrev_b32 v{adr}, 5, v{adr}
v_lshrrev_b32 v{rd}, 4, v{V_LANE}
v_lshl_add_u32 v{adr}, v{rd}, 3, v{adr}""")
    k.tag = "astore"
    for c in range(4):
        for j in range(2):
            k(f"v_pk_add_f32 {vr(F + 4 * c + 2 * j, 2)}, {vr(F + 4 * c + 2 * j, 2)}, {vr(G + 4 * c + 2 * j, 2)}")
        P = C_ACC + 2 * c
        k(f"v_cvt_pk_bf16_f32 v{P}, v{F + 4 * c}, v{F + 4 * c + 1}")
        k(f"v_cvt_pk_bf16_f32 v{P + 1}, v{F + 4 * c + 2}, v{F + 4 * c + 3}")
        k(f"buffer_store_dwordx2 {vr(P, 2)}, v{adr}, {sr(R_WS, 4)}, s{t} offen offset:{512 * c} sc1")
    k.tag = None


S_RBP, S_DB = 95, 96
S_G2W, S_G2H0, S_G2H1 = 97, 98, 99
G2_DEPTH = 7
G2_H = 0
G2_ACC = 64
G2_FR = 192
G2_AD = 224
RED = 0
ATL = 49152


def g2_role(k):
    t = S_T0
    wv, hv, ra, tmp = G2_AD, G2_AD + 1, G2_AD + 2, G2_AD + 4
    k(f"""; ---- role in GEMM2
s_lshr_b32 s{t}, s{S_J}, 3
s_lshl_b32 s{S_RBP}, s{S_XCD}, 2
s_add_u32 s{S_RBP}, s{S_RBP}, s{t}
s_and_b32 s{S_DB}, s{S_J}, 7
s_mul_i32 s{t}, s{S_WAVE}, {28 * 16 * 1024}
s_lshl_b32 s{t + 1}, s{S_DB}, 7
s_add_u32 s{S_G2W}, s{t}, s{t + 1}
s_lshr_b32 s{t}, s{S_WAVE}, 1
s_lshl_b32 s{t + 1}, s{S_RBP}, 1
s_add_u32 s{t + 2}, s{t + 1}, s{t}
s_xor_b32 s{t}, s{t}, 1
s_add_u32 s{t + 3}, s{t + 1}, s{t}
s_mul_i32 s{t}, s{S_WAVE}, 28
s_mul_i32 s{t + 2}, s{t + 2}, 112
s_mul_i32 s{t + 3}, s{t + 3}, 112
s_add_u32 s{t + 2}, s{t + 2}, s{t}
s_add_u32 s{t + 3}, s{t + 3}, s{t}
s_lshl_b32 s{t + 2}, s{t + 2}, 10
s_lshl_b32 s{t + 3}, s{t + 3}, 10
s_add_u32 s{S_G2H0}, s{t + 2}, {WS_H}
s_add_u32 s{S_G2H1}, s{t + 3}, {WS_H}
v_lshrrev_b32 v{tmp}, 3, v{V_LANE}
v_bfe_u32 v{tmp + 1}, v{V_LANE}, 4, 1
v_lshlrev_b32 v{tmp + 1}, 2, v{tmp + 1}
v_and_b32 v{tmp + 2}, 7, v{V_LANE}
v_xor_b32 v{tmp + 1}, v{tmp + 1}, v{tmp + 2}
v_lshlrev_b32 v{tmp}, 10, v{tmp}
v_lshl_add_u32 v{wv}, v{tmp + 1}, 4, v{tmp}
v_lshlrev_b32 v{hv}, 4, v{V_LANE}
v_bfe_u32 v{tmp}, v{V_LANE}, 2, 2
v_lshrrev_b32 v{tmp + 1}, 5, v{V_LANE}
v_lshl_add_u32 v{tmp + 1}, v{tmp + 1}, 2, v{tmp}
v_lshlrev_b32 v{tmp + 1}, 7, v{tmp + 1}
v_lshrrev_b32 v{tmp}, 1, v{tmp}
s_and_b32 s{t}, s{S_WAVE}, 1
v_xor_b32 v{tmp}, s{t}, v{tmp}
v_lshl_add_u32 v{tmp + 1}, v{tmp}, 6, v{tmp + 1}
v_bfe_u32 v{tmp}, v{V_LANE}, 4, 1
v_lshl_add_u32 v{tmp + 1}, v{tmp}, 5, v{tmp + 1}
v_and_b32 v{tmp}, 3, v{V_LANE}
v_lshl_add_u32 v{tmp + 1}, v{tmp}, 3, v{tmp + 1}
s_lshl_b32 s{t}, s{S_WAVE}, 15
v_add_u32 v{ra}, s{t}, v{tmp + 1}
v_xor_b32 v{ra + 1}, 64, v{ra}""")


def g2_wdma(k, ks):
    t = S_T0
    wv = G2_AD
    k.tag = ("w2", ks)
    k(f"""s_lshl_b32 s{t}, s{S_WAVE}, 15
s_add_u32 m0, s{t}, {(ks % 16) * 2048}
s_add_u32 s{t + 1}, s{S_G2W}, {ks * 16 * 1024}
buffer_load_dwordx4 v{wv}, {sr(R_W2, 4)}, s{t + 1} offen lds
s_add_u32 m0, m0, 1024
s_add_u32 s{t + 1}, s{t + 1}, 8192
buffer_load_dwordx4 v{wv}, {sr(R_W2, 4)}, s{t + 1} offen lds""")
    k.tag = None


def g2_hload(k, ks):
    t = S_T0
    hv = G2_AD + 1
    h = G2_H + 8 * (ks % G2_DEPTH)
    k(f"""s_add_u32 s{t + 2}, s{S_G2H0}, {ks * 1024}
s_add_u32 s{t + 3}, s{S_G2H1}, {ks * 1024}
buffer_load_dwordx4 {ar(h, 4)}, v{hv}, {sr(R_WS, 4)}, s{t + 2} offen sc1
buffer_load_dwordx4 {ar(h + 4, 4)}, v{hv}, {sr(R_WS, 4)}, s{t + 3} offen sc1""")


def g2_main(k):
    ra = G2_AD + 2
    k("; ---- G2: main")
    for i in range(64):
        k(f"v_accvgpr_write_b32 a{G2_ACC + i}, 0")

    def reads(ks):
        f = G2_FR + 8 * (ks % 2)
        k.wait_tag(("w2", ks))
        for s in range(2):
            for j in range(2):
                k(f"ds_read_b64_tr_b16 {vr(f + 4 * s + 2 * j, 2)}, v{ra + s} offset:{2048 * (ks % 16) + 1024 * j}")

    reads(0)
    for ks in range(28):
        if ks < 27:
            reads(ks + 1)
        f = G2_FR + 8 * (ks % 2)
        h = G2_H + 8 * (ks % G2_DEPTH)
        for st in range(2):
            for sd in range(2):
                a = G2_ACC + 16 * (2 * st + sd)
                k(f"v_mfma_f32_32x32x16_bf16 {ar(a, 16)}, {vr(f + 4 * sd, 4)}, {ar(h + 4 * st, 4)}, {ar(a, 16)}")
        if ks + G2_DEPTH < 28:
            g2_hload(k, ks + G2_DEPTH)
        if ks + 16 < 28:
            g2_wdma(k, ks + 16)


def g2_finish(k):
    t = S_T0
    adr, rd, tmp = G2_AD, G2_AD + 1, G2_AD + 4
    F, G, AT, P = 128, 144, 192, 200
    k(f"""; ---- G2: cross-wave reduction
s_waitcnt lgkmcnt(0)
s_barrier
v_lshlrev_b32 v{tmp}, 4, v{V_LANE}""")
    for s in range(1, 4):
        k(f"""s_xor_b32 s{t}, s{S_WAVE}, {s}
s_mul_i32 s{t}, s{t}, 12288
s_add_u32 s{t}, s{t}, {RED + (s - 1) * 4096}
v_add_u32 v{adr}, s{t}, v{tmp}""")
        for q in range(4):
            k(f"ds_write_b128 v{adr}, {ar(G2_ACC + 16 * s + 4 * q, 4)} offset:{1024 * q}")
    k(f"""s_lshl_b32 s{t}, s{S_DB}, 6
s_lshl_b32 s{t + 1}, s{S_WAVE}, 4
s_add_u32 s{t}, s{t}, s{t + 1}
s_lshl_b32 s{t}, s{t}, 12
s_lshl_b32 s{t + 1}, s{S_RBP}, 7
s_add_u32 s{t}, s{t}, s{t + 1}
s_add_u32 s{t}, s{t}, {WS_AT}
s_add_u32 s{t + 1}, s{t}, {8 * 4096}
v_lshrrev_b32 v{adr}, 3, v{V_LANE}
v_and_b32 v{rd}, 7, v{V_LANE}
v_lshlrev_b32 v{rd}, 4, v{rd}
v_lshl_add_u32 v{tmp + 1}, v{adr}, 12, v{rd}""")
    if k.single:
        wait_flags_at(k)
    k(f"""buffer_load_dwordx4 {vr(AT, 4)}, v{tmp + 1}, {sr(R_WS, 4)}, s{t} offen sc1
buffer_load_dwordx4 {vr(AT + 4, 4)}, v{tmp + 1}, {sr(R_WS, 4)}, s{t + 1} offen sc1
s_lshl_b32 s{t + 2}, s{S_RBP}, 6
s_lshr_b32 s{t + 3}, s{S_WAVE}, 1
s_lshl_b32 s{t + 3}, s{t + 3}, 5
s_add_u32 s{t + 2}, s{t + 2}, s{t + 3}
s_lshl_b32 s{t + 4}, s{t + 2}, 2
s_add_u32 s{t + 4}, s{t + 4}, {WS_G}
v_and_b32 v{tmp + 2}, 31, v{V_LANE}
v_lshlrev_b32 v{tmp + 3}, 2, v{tmp + 2}
buffer_load_dword v{tmp + 4}, v{tmp + 3}, {sr(R_WS, 4)}, s{t + 4} offen sc1
v_mul_u32_u24 v{adr}, {TTP}, v{adr}
v_add_u32 v{adr}, v{adr}, v{rd}
s_mul_i32 s{t + 5}, s{S_WAVE}, {16 * TTP}
s_add_u32 s{t + 5}, s{t + 5}, {ATL}
v_add_u32 v{adr}, s{t + 5}, v{adr}
ds_write_b128 v{adr}, {vr(AT, 4)}
ds_write_b128 v{adr}, {vr(AT + 4, 4)} offset:{8 * TTP}""")
    for i in range(16):
        k(f"v_accvgpr_read_b32 v{F + i}, a{G2_ACC + i}")
    k(f"""s_waitcnt lgkmcnt(0)
s_barrier
s_mul_i32 s{t + 5}, s{S_WAVE}, 12288
s_add_u32 s{t + 5}, s{t + 5}, {RED}
v_add_u32 v{rd}, s{t + 5}, v{tmp}""")
    for s in range(3):
        for q in range(4):
            k(f"ds_read_b128 {vr(G + 16 * s + 4 * q, 4)}, v{rd} offset:{4096 * s + 1024 * q}")
    k(f"""v_bfe_u32 v{adr}, v{V_LANE}, 2, 2
v_lshrrev_b32 v{tmp + 5}, 5, v{V_LANE}
v_lshl_add_u32 v{adr}, v{tmp + 5}, 2, v{adr}
s_and_b32 s{t + 5}, s{S_WAVE}, 1
s_lshl_b32 s{t + 6}, s{t + 5}, 5
v_add_u32 v{adr}, s{t + 6}, v{adr}
v_mul_u32_u24 v{adr}, {TTP}, v{adr}
v_bfe_u32 v{tmp + 6}, v{V_LANE}, 4, 1
v_and_b32 v{tmp + 7}, 3, v{V_LANE}
v_lshl_add_u32 v{tmp + 6}, v{tmp + 6}, 2, v{tmp + 7}
v_lshl_add_u32 v{adr}, v{tmp + 6}, 3, v{adr}
s_lshr_b32 s{t + 6}, s{S_WAVE}, 1
s_lshl_b32 s{t + 6}, s{t + 6}, 6
s_add_u32 s{t + 6}, s{t + 6}, {ATL}
v_add_u32 v{adr}, s{t + 6}, v{adr}""")
    for q in range(4):
        k(f"ds_read_b64_tr_b16 {vr(AT + 2 * q, 2)}, v{adr} offset:{8 * q * TTP}")
    for s in range(3):
        for j in range(8):
            k(f"v_pk_add_f32 {vr(F + 2 * j, 2)}, {vr(F + 2 * j, 2)}, {vr(G + 16 * s + 2 * j, 2)}")
    g = tmp + 4
    X = G
    for q in range(4):
        for d in range(2):
            k(f"v_lshlrev_b32 v{X + 4 * q + 2 * d}, 16, v{AT + 2 * q + d}")
            k(f"v_and_b32 v{X + 4 * q + 2 * d + 1}, 0xffff0000, v{AT + 2 * q + d}")
    for i in range(16):
        k(f"v_sub_f32 v{X + i}, v{X + i}, v{F + i}")
    for i in range(16):
        k(f"v_fma_f32 v{F + i}, v{g}, v{X + i}, v{F + i}")
    for j in range(8):
        k(f"v_cvt_pk_bf16_f32 v{P + j}, v{F + 2 * j}, v{F + 2 * j + 1}")
    for q in (0, 2):
        for x in range(2):
            k(f"v_permlane32_swap_b32 v{P + 2 * q + x}, v{P + 2 * q + 2 + x}")
    k(f"""s_lshl_b32 s{t + 2}, s{t + 2}, 10
s_lshl_b32 s{t + 3}, s{S_DB}, 7
s_add_u32 s{t + 2}, s{t + 2}, s{t + 3}
s_lshl_b32 s{t + 5}, s{t + 5}, 6
s_add_u32 s{t + 2}, s{t + 2}, s{t + 5}
v_lshlrev_b32 v{adr}, 10, v{tmp + 2}
v_lshl_add_u32 v{adr}, v{tmp + 5}, 4, v{adr}
buffer_store_dwordx4 {vr(P, 4)}, v{adr}, {sr(R_OUT, 4)}, s{t + 2} offen
buffer_store_dwordx4 {vr(P + 4, 4)}, v{adr}, {sr(R_OUT, 4)}, s{t + 2} offen offset:32""")


def dump_lds(k, lds_off, nbytes, ws_off_expr_s, V):
    k("s_waitcnt lgkmcnt(0)\ns_barrier")
    k(f"v_lshlrev_b32 v{V}, 4, v0")
    for o in range(0, nbytes, 4096):
        k(f"ds_read_b128 {vr(V + 2, 4)}, v{V} offset:{lds_off + o}" if lds_off + o < 65536 else
          f"v_add_u32 v{V + 1}, {lds_off + o}, v{V}\nds_read_b128 {vr(V + 2, 4)}, v{V + 1}")
        k(f"v_add_u32 v{V + 1}, {o}, v{V}")
        k(f"buffer_store_dwordx4 {vr(V + 2, 4)}, v{V + 1}, {sr(R_WS, 4)}, s{ws_off_expr_s} offen")
        k("s_waitcnt vmcnt(0)")


def wrap(name, body, vgpr=256, agpr=256):
    return f""".text
.globl {name}
.p2align 8
.type {name},@function
{name}:
{body}
.section .rodata,"a"
.p2align 6
.amdhsa_kernel {name}
  .amdhsa_next_free_vgpr {vgpr + agpr}
  .amdhsa_next_free_sgpr 102
  .amdhsa_accum_offset {vgpr}
  .amdhsa_group_segment_fixed_size 0
  .amdhsa_kernarg_size 136
  .amdhsa_user_sgpr_count 2
  .amdhsa_user_sgpr_kernarg_segment_ptr 1
  .amdhsa_system_sgpr_workgroup_id_x 1
.end_amdhsa_kernel
"""


def table_text():
    tab = gather_table()
    out = [".text", ".p2align 8", ".type L_gtab,@object", "L_gtab:"]
    for i in range(0, len(tab), 16):
        out.append("  .short " + ", ".join(str(x) for x in tab[i:i + 16]))
    out.append(".size L_gtab, .-L_gtab")
    return "\n".join(out) + "\n"


def build_multi(dump=None):
    out = []
    k = Asm(); k.kname = "a"; k.single = False
    end = "L_end_a"
    prologue(k, end)
    phase_t_load(k, 8)
    spare, join = "L_spare_a", "L_join_a"
    k(f"s_cmp_ge_u32 s{S_J}, 28\ns_cbranch_scc1 {spare}")
    st = (list(k.lg), list(k.vm))
    g1_role(k)
    g1_setup(k, 64)
    g1_prologue_dma(k)
    phase_t_rest(k, 8)
    g1_bias(k, 64)
    g1_main(k)
    g1_epilogue(k)
    k(f"s_branch {end}\n{spare}:")
    k.lg, k.vm = st
    phase_t_rest(k, 8)
    phase_gate(k)
    k(f"{end}:\ns_endpgm")
    out.append(wrap("ka_kernel", k.finish()))
    k = Asm(); k.kname = "b"; k.single = False
    end = "L_end_b"
    prologue(k, end)
    phase_k_load(k, 8)
    conv_uload(k, 200)
    phase_k_tables(k, 8, 24)
    phase_k_mfma(k, 8, 24)
    phase_k_expand(k, 8, 24)
    if dump == "k":
        k(f"s_mul_i32 s{S_T0}, s2, {4 * 4096 + 4096}\ns_add_u32 s{S_T0}, s{S_T0}, {WS_DBG}")
        dump_lds(k, CV, 5 * 4096, S_T0, 24)
    conv_ustore(k, 200)
    conv_main(k)
    conv_finish(k)
    k(f"{end}:\ns_endpgm")
    out.append(wrap("kb_kernel", k.finish()))
    k = Asm(); k.kname = "c"; k.single = False
    end = "L_end_c"
    prologue(k, end)
    g2_role(k)
    for ks in range(16):
        g2_wdma(k, ks)
    for ks in range(G2_DEPTH):
        g2_hload(k, ks)
    g2_main(k)
    g2_finish(k)
    k(f"{end}:\ns_endpgm")
    out.append(wrap("kc_kernel", k.finish()))
    head = "".join(f"; @launch kernel={n} grid=(256,1,1) block=(256,1,1) lds={LDS_BYTES}\n" for n in ("ka_kernel", "kb_kernel", "kc_kernel"))
    return head + '.amdgcn_target "amdgcn-amd-amdhsa--gfx950"\n' + "".join(out) + table_text()


if __name__ == "__main__":
    ap = argparse.ArgumentParser()
    ap.add_argument("--mode", default="multi")
    ap.add_argument("--dump", default=None)
    a = ap.parse_args()
    if a.mode == "multi":
        sys.stdout.write(build_multi(a.dump))
```

```python
import sys
import struct
import argparse
from asmlib import Asm

KNAME = "gated_mix__ssm_conv_s4__dense_activation_mish__prompt_kernel"

WS_FLAGS = 0x0
FL_UT = 0x0
FL_H = 0x400
FL_AT = 0xC00
FL_BYTES = 0x1000
WS_G = 0x2000
WS_UT = 0x100000
WS_AT = 0x300000
WS_H = 0x500000
WS_DBG = 0x1000000
WS_BYTES = 0x10000000

SLOT = 32768
TB = 98304
TROW = 544
TCH = 57 * TROW
TT = TB
NS = 3
W2R = 16
W2STRIDE = 32768
TTP = 144
KC = TB + 2 * TCH
KCH = 1552
CV = 131072
CPY = 4160
UB = CV + 4 * CPY
UCH = 4576
LDS_BYTES = 163840

S_U, S_ARE, S_AIM, S_BRE, S_BIM, S_CRE, S_CIM, S_LDT, S_DSK = 4, 6, 8, 10, 12, 14, 16, 18, 20
S_W1, S_B1, S_W2, S_GW, S_OUT, S_DBG, S_WS = 24, 26, 28, 30, 32, 34, 36
R_X, R_W1, R_W2, R_WS, R_OUT, R_DBG = 40, 44, 48, 52, 56, 60
S_WAVE, S_XCD, S_J, S_RB, S_FS, S_ROT = 64, 65, 66, 67, 68, 69
S_T0 = 70

V_LANE = 1


def f32(x):
    return "0x%08x" % struct.unpack("<I", struct.pack("<f", x))[0]


LOG2E = f32(1.4426950408889634)
LOG2E_LO = f32(1.4426950408889634 - struct.unpack("<f", struct.pack("<f", 1.4426950408889634))[0])
LN2 = f32(0.6931471805599453)
INV2PI = f32(0.15915494309189535)


def vr(a, n):
    return f"v[{a}:{a + n - 1}]" if n > 1 else f"v{a}"


def ar(a, n):
    return f"a[{a}:{a + n - 1}]" if n > 1 else f"a{a}"


def sr(a, n=2):
    return f"s[{a}:{a + n - 1}]"


def srd(k, s, ptr, nbytes):
    k(f"""s_mov_b32 s{s}, s{ptr}
s_and_b32 s{s + 1}, s{ptr + 1}, 0xffff
s_mov_b32 s{s + 2}, {nbytes}
s_mov_b32 s{s + 3}, 0x00020000""")


V_STAMP = 255
WS_STAMP = WS_DBG + 0x800000
STAMPS = False
EXP = set()


def stamp(k, idx):
    if not STAMPS:
        return
    lg = list(k.lg)
    k(f"s_waitcnt lgkmcnt(0)\ns_memrealtime s[100:101]\ns_waitcnt lgkmcnt(0)\nv_writelane_b32 v{V_STAMP}, s100, {idx}")
    k(f"s_memtime s[100:101]\ns_waitcnt lgkmcnt(0)\nv_writelane_b32 v{V_STAMP}, s100, {idx + 32}")


def stamp_flush(k, kid):
    if not STAMPS:
        return
    t = S_T0
    k(f"""s_lshl_b32 s{t}, s2, 2
s_add_u32 s{t}, s{t}, s{S_WAVE}
s_lshl_b32 s{t}, s{t}, 8
s_add_u32 s{t}, s{t}, {WS_STAMP + kid * 0x40000}
v_lshlrev_b32 v2, 2, v{V_LANE}
buffer_store_dword v{V_STAMP}, v2, {sr(R_WS, 4)}, s{t} offen
s_waitcnt vmcnt(0)""")


def prologue(k, end_label):
    k(f"""s_cmp_ge_u32 s2, 256
s_cbranch_scc1 {end_label}
s_load_dwordx16 s[4:19], s[0:1], 0
s_load_dwordx16 s[20:35], s[0:1], 64
s_load_dwordx2 s[36:37], s[0:1], 128
v_lshrrev_b32 v2, 6, v0
v_and_b32 v{V_LANE}, 63, v0
s_and_b32 s{S_XCD}, s2, 7
v_readfirstlane_b32 s{S_WAVE}, v2
s_lshr_b32 s{S_J}, s2, 3
s_waitcnt lgkmcnt(0)""")
    if STAMPS:
        k(f"v_mov_b32 v{V_STAMP}, 0")
    stamp(k, 0)
    srd(k, R_X, S_U, 2048 * 512 * 2)
    srd(k, R_W1, S_W1, 512 * 1792 * 2)
    srd(k, R_W2, S_W2, 1792 * 512 * 2)
    srd(k, R_WS, S_WS, WS_BYTES)
    srd(k, R_OUT, S_OUT, 2048 * 512 * 2)
    srd(k, R_DBG, S_DBG, 256)


def phase_t_load(k, V):
    t = S_T0
    k(f"""; ---- T: load a 64 x 64 tile of u
v_lshrrev_b32 v{V + 8}, 3, v{V_LANE}
v_lshlrev_b32 v{V + 8}, 10, v{V + 8}
v_and_b32 v{V + 9}, 7, v{V_LANE}
v_lshl_add_u32 v{V + 8}, v{V + 9}, 4, v{V + 8}
s_lshl_b32 s{t}, s{S_J}, 6
s_lshl_b32 s{t + 1}, s{S_WAVE}, 4
s_add_u32 s{t}, s{t}, s{t + 1}
s_lshl_b32 s{t}, s{t}, 10
s_lshl_b32 s{t + 1}, s{S_XCD}, 7
s_add_u32 s{t}, s{t}, s{t + 1}
s_add_u32 s{t + 1}, s{t}, 8192
buffer_load_dwordx4 {vr(V, 4)}, v{V + 8}, {sr(R_X, 4)}, s{t} offen
buffer_load_dwordx4 {vr(V + 4, 4)}, v{V + 8}, {sr(R_X, 4)}, s{t + 1} offen""")


def phase_t_rest(k, V):
    t = S_T0
    a, b = V + 8, V + 9
    k(f"""; ---- T: transpose through LDS and store
v_lshrrev_b32 v{a}, 3, v{V_LANE}
v_mul_u32_u24 v{a}, {TTP}, v{a}
v_and_b32 v{b}, 7, v{V_LANE}
v_lshl_add_u32 v{a}, v{b}, 4, v{a}
s_mul_i32 s{t}, s{S_WAVE}, {16 * TTP}
s_add_u32 s{t}, s{t}, {TT}
v_add_u32 v{a}, s{t}, v{a}
ds_write_b128 v{a}, {vr(V, 4)}
ds_write_b128 v{a}, {vr(V + 4, 4)} offset:{8 * TTP}
v_lshrrev_b32 v{a}, 4, v{V_LANE}
v_lshlrev_b32 v{a}, 3, v{a}
v_bfe_u32 v{b}, v{V_LANE}, 2, 2
v_add_u32 v{a}, v{a}, v{b}
v_mul_u32_u24 v{a}, {TTP}, v{a}
v_and_b32 v{b}, 3, v{V_LANE}
v_lshl_add_u32 v{a}, v{b}, 3, v{a}
s_lshl_b32 s{t}, s{S_WAVE}, 5
s_add_u32 s{t}, s{t}, {TT}
v_add_u32 v{a}, s{t}, v{a}
s_waitcnt lgkmcnt(0)
s_barrier
ds_read_b64_tr_b16 {vr(V, 2)}, v{a}
ds_read_b64_tr_b16 {vr(V + 2, 2)}, v{a} offset:{4 * TTP}
ds_read_b64_tr_b16 {vr(V + 4, 2)}, v{a} offset:{32 * TTP}
ds_read_b64_tr_b16 {vr(V + 6, 2)}, v{a} offset:{36 * TTP}
v_and_b32 v{b}, 15, v{V_LANE}
v_lshlrev_b32 v{b}, 12, v{b}
v_lshrrev_b32 v{a}, 4, v{V_LANE}
v_lshl_add_u32 v{b}, v{a}, 4, v{b}
s_lshl_b32 s{t}, s{S_XCD}, 6
s_lshl_b32 s{t + 1}, s{S_WAVE}, 4
s_add_u32 s{t}, s{t}, s{t + 1}
s_lshl_b32 s{t}, s{t}, 12
s_lshl_b32 s{t + 1}, s{S_J}, 7
s_add_u32 s{t}, s{t}, s{t + 1}
s_add_u32 s{t}, s{t}, {WS_UT}""")
    k.tag = "tstore"
    k(f"""buffer_store_dwordx4 {vr(V, 4)}, v{b}, {sr(R_WS, 4)}, s{t} offen sc1
buffer_store_dwordx4 {vr(V + 4, 4)}, v{b}, {sr(R_WS, 4)}, s{t} offen offset:64 sc1""")
    k.tag = None


def kslot(lt):
    if lt < 256:
        a, rem = divmod(lt, 128); b, d = divmod(rem, 8); tile, row = 0, 8 * a + d
    elif lt < 512:
        a, rem = divmod(lt - 256, 128); b, d = divmod(rem, 8); tile, row = 1, 4 * a + d // 2
    elif lt < 1024:
        a, rem = divmod(lt - 512, 128); b, d = divmod(rem, 8); tile, row = 1, 8 + 2 * a + d // 4
    else:
        a, rem = divmod(lt - 1024, 128); b = rem // 8; tile, row = 2, a
    g, r = divmod(row, 4)
    return tile * 256 + (16 * g + b) * 4 + r


def bf16_round_int(l):
    u = struct.unpack("<I", struct.pack("<f", float(l)))[0]
    u = (u + 0x7FFF + ((u >> 16) & 1)) & 0xFFFF0000
    return int(struct.unpack("<f", struct.pack("<I", u))[0])


def gather_table():
    tab = []
    for p in range(2064):
        l = 2047 - p
        tab.append(2 * kslot(bf16_round_int(l)) if l >= 0 else 1536)
    return tab


def phase_k_load(k, V):
    t = S_T0
    pc = k.newlabel("L_pc_" + k.kname)
    k(f"""; ---- K: parameter loads
s_lshl_b32 s{t}, s2, 2
s_add_u32 s{t}, s{t}, s{S_WAVE}
s_lshl_b32 s{t}, s{t}, 7
v_lshl_add_u32 v{V + 13}, v{V_LANE}, 1, s{t}""")
    for i, s in enumerate((S_ARE, S_AIM, S_BRE, S_BIM, S_CRE, S_CIM)):
        k(f"global_load_ushort v{V + i}, v{V + 13}, {sr(s)}")
    k(f"""s_lshr_b32 s{t}, s{S_WAVE}, 1
s_lshl_b32 s{t + 1}, s2, 1
s_add_u32 s{t}, s{t}, s{t + 1}
s_lshl_b32 s{t}, s{t}, 1
v_mov_b32 v{V + 13}, s{t}
global_load_ushort v{V + 6}, v{V + 13}, {sr(S_LDT)}
global_load_ushort v{V + 7}, v{V + 13}, {sr(S_DSK)}
s_getpc_b64 {sr(t + 2)}
{pc}:
s_add_u32 s{t + 2}, s{t + 2}, L_gtab-{pc}
s_addc_u32 s{t + 3}, s{t + 3}, 0
v_lshlrev_b32 v{V + 13}, 4, v0
global_load_dwordx4 {vr(V + 8, 4)}, v{V + 13}, {sr(t + 2)}
global_load_ushort v{V + 12}, v{V + 13}, {sr(t + 2)} offset:16""")


def cmul(k, d, a, b):
    tmp = k.ctmp
    k(f"v_pk_mul_f32 {vr(tmp, 2)}, {vr(a, 2)}, {vr(b, 2)} op_sel_hi:[0,1]")
    k(f"v_pk_fma_f32 {vr(d, 2)}, {vr(a, 2)}, {vr(b, 2)}, {vr(tmp, 2)} op_sel:[1,1,0] op_sel_hi:[1,0,1] neg_lo:[0,1,0]")


def phase_k_tables(k, V, W, fill=None):
    t = S_T0
    are, aim, bre, bim, cre, cim, ldt, dsk = range(V, V + 8)
    assert W % 2 == 0
    lr, an = W, W + 1
    w1, w2, w4, w8, w128 = W + 2, W + 4, W + 6, W + 8, W + 10
    S, T, Y = W + 12, W + 14, W + 16
    tmpA, tmpB = W + 18, W + 20
    x0, x1, x2, x3 = W + 22, W + 23, W + 24, W + 25
    cv0, cv1 = W + 26, W + 27
    adr = W + 28
    k(f"""; ---- K: per-mode constants
v_lshlrev_b32 v{ldt}, 16, v{ldt}
v_mul_f32 v{x0}, {LOG2E}, v{ldt}
s_mov_b32 s{t}, {LOG2E}
v_fma_f32 v{x1}, v{ldt}, s{t}, -v{x0}
v_fmac_f32 v{x1}, {LOG2E_LO}, v{ldt}
v_exp_f32 v{x0}, v{x0}
v_mul_f32 v{x1}, {LN2}, v{x1}
v_fma_f32 v{x0}, v{x0}, v{x1}, v{x0}
v_cvt_pk_bf16_f32 v{x0}, v{x0}, v{x0}
v_lshlrev_b32 v{x0}, 16, v{x0}""")
    for r in (are, aim, bre, bim, cre, cim, dsk):
        k(f"v_lshlrev_b32 v{r}, 16, v{r}")
    k(f"""v_mul_f32 v{lr}, v{x0}, v{are}
v_mul_f32 v{an}, v{x0}, v{aim}
v_mul_f32 v{lr}, {LOG2E}, v{lr}
v_mul_f32 v{an}, {INV2PI}, v{an}
v_mul_f32 v{bre}, v{x0}, v{bre}
v_mul_f32 v{bim}, v{x0}, v{bim}
v_mul_f32 v{S}, v{cre}, v{bre}
v_mul_f32 v{S + 1}, v{cre}, v{bim}
v_fma_f32 v{S}, -v{cim}, v{bim}, v{S}
v_fma_f32 v{S + 1}, v{cim}, v{bre}, v{S + 1}""")

    def cexp(d, m):
        if m == 1:
            k(f"v_fract_f32 v{x1}, v{an}")
            k(f"v_exp_f32 v{x0}, v{lr}")
        else:
            k(f"v_mul_f32 v{x1}, {f32(m)}, v{an}")
            k(f"v_mul_f32 v{x0}, {f32(m)}, v{lr}")
            k(f"v_fract_f32 v{x1}, v{x1}")
            k(f"v_exp_f32 v{x0}, v{x0}")
        k(f"v_cos_f32 v{x2}, v{x1}")
        k(f"v_sin_f32 v{x3}, v{x1}")
        k(f"v_mul_f32 v{d}, v{x0}, v{x2}")
        k(f"v_mul_f32 v{d + 1}, v{x0}, v{x3}")

    cexp(w1, 1)
    cexp(w8, 8)
    cexp(w128, 128)
    k.ctmp = tmpA
    cmul(k, w2, w1, w1)
    cmul(k, w4, w2, w2)
    k(f"""s_lshr_b32 s{t}, s{S_WAVE}, 1
s_mul_i32 s{t}, s{t}, {TCH}
s_and_b32 s{t + 1}, s{S_WAVE}, 1
s_lshl_b32 s{t + 1}, s{t + 1}, 8
s_add_u32 s{t}, s{t}, s{t + 1}
s_add_u32 s{t}, s{t}, {TB}
v_lshl_add_u32 v{adr}, v{V_LANE}, 2, s{t}""")
    k("s_waitcnt lgkmcnt(0)\ns_barrier")

    extra = W + 30

    def mul_ins(d, a, b, tmp):
        return [f"v_pk_mul_f32 {vr(tmp, 2)}, {vr(a, 2)}, {vr(b, 2)} op_sel_hi:[0,1]",
                f"v_pk_fma_f32 {vr(d, 2)}, {vr(a, 2)}, {vr(b, 2)}, {vr(tmp, 2)} op_sel:[1,1,0] op_sel_hi:[1,0,1] neg_lo:[0,1,0]"]

    def put_ins(row, pair, neg, c):
        return [f"v_cvt_pk_bf16_f32 v{c}, v{pair}, {'-' if neg else ''}v{pair + 1}",
                f"ds_write_b32 v{adr}, v{c} offset:{row * TROW}"]

    class Chain:
        def __init__(self, idx):
            self.tmp = extra + 4 * idx
            self.cv = extra + 4 * idx + 2
            self.ins = []

        def mul(self, d, a, b):
            self.ins += mul_ins(d, a, b, self.tmp)

        def put(self, row, pair, neg=False):
            self.ins += put_ins(row, pair, neg, self.cv)

    def srow(a):
        return 8 * a if a <= 1 else 16 + 4 * (a - 2) if a <= 3 else 24 + 2 * (a - 4) if a <= 7 else 32 + (a - 8)

    sv = extra + 16
    cS, cY, cT, cU = Chain(0), Chain(1), Chain(2), Chain(3)
    T2 = sv + 16
    k(f"v_mov_b32 v{sv}, v{S}\nv_mov_b32 v{sv + 1}, v{S + 1}\nv_mov_b32 v{Y}, 1.0\nv_mov_b32 v{Y + 1}, 0")
    cS.put(0, sv)
    for a in range(1, 17):
        d = sv + 2 * a if a <= 7 else S
        s = sv + 2 * (a - 1) if a - 1 <= 7 else S
        cS.mul(d, s, w128)
        cS.put(srow(a), d)
    cY.put(41, Y, True)
    cY.put(42, w8, True)
    for b in range(2, 16):
        cY.mul(Y, w8 if b == 2 else Y, w8)
        cY.put(41 + b, Y, True)
    sub = {0: (7, w1), 1: (7, w1), 2: (3, w2), 3: (3, w2), 4: (1, w4), 5: (1, w4), 6: (1, w4), 7: (1, w4)}
    marks = {}
    for ch, reg, alist in ((cT, T, (0, 2, 4, 6)), (cU, T2, (1, 3, 5, 7))):
        for a in alist:
            marks[(id(ch), len(ch.ins))] = a
            n, mul = sub[a]
            for j in range(n):
                ch.mul(reg, sv + 2 * a if j == 0 else reg, mul)
                ch.put(srow(a) + 1 + j, reg)
    k("; ---- K: tables")
    fill = list(fill or [])
    pos = {id(c): 0 for c in (cS, cY, cT, cU)}
    total = sum(len(c.ins) for c in (cS, cY, cT, cU))
    nfill, done = len(fill), 0
    while any(pos[id(c)] < len(c.ins) for c in (cS, cY, cT, cU)):
        for c in (cS, cY, cT, cU):
            p = pos[id(c)]
            if p >= len(c.ins):
                continue
            need_a = marks.get((id(c), p))
            if need_a is not None and need_a > 0 and pos[id(cS)] < 2 + 4 * (need_a - 1) + 2:
                continue
            k(c.ins[p])
            pos[id(c)] = p + 1
            done += 1
            if fill and done * nfill >= (nfill - len(fill) + 1) * total:
                fill.pop(0)()
    for f in fill:
        f()
    k("s_waitcnt lgkmcnt(0)\ns_barrier")


def phase_k_mfma(k, V, W):
    t = S_T0
    dsk = V + 7
    a1, a2, bb = W, W + 1, W + 2
    acc1, acc2 = W + 4, W + 8
    fr = W + 12
    k(f"""; ---- K: K = X * Y^T
v_and_b32 v{a1}, 15, v{V_LANE}
v_mul_u32_u24 v{a1}, {TROW}, v{a1}
v_lshrrev_b32 v{a2}, 4, v{V_LANE}
v_lshl_add_u32 v{a1}, v{a2}, 4, v{a1}
s_lshr_b32 s{t}, s{S_WAVE}, 1
s_mul_i32 s{t}, s{t}, {TCH}
s_add_u32 s{t}, s{t}, {TB}
v_add_u32 v{bb}, s{t}, v{a1}
v_add_u32 v{a2}, {16 * TROW}, v{bb}
s_and_b32 s{t + 1}, s{S_WAVE}, 1
s_mul_i32 s{t + 1}, s{t + 1}, {32 * TROW}
v_add_u32 v{a1}, s{t + 1}, v{bb}""")
    for ks in range(8):
        f = fr + 12 * (ks % 3)
        k(f"ds_read_b128 {vr(f, 4)}, v{a1} offset:{64 * ks}")
        k(f"ds_read_b128 {vr(f + 4, 4)}, v{a2} offset:{64 * ks}")
        k(f"ds_read_b128 {vr(f + 8, 4)}, v{bb} offset:{41 * TROW + 64 * ks}")
        if ks >= 2:
            g = fr + 12 * ((ks - 2) % 3)
            k(f"v_mfma_f32_16x16x32_bf16 {vr(acc1, 4)}, {vr(g, 4)}, {vr(g + 8, 4)}, {vr(acc1, 4) if ks > 2 else 0}")
            k(f"v_mfma_f32_16x16x32_bf16 {vr(acc2, 4)}, {vr(g + 4, 4)}, {vr(g + 8, 4)}, {vr(acc2, 4) if ks > 2 else 0}")
    for ks in (6, 7):
        g = fr + 12 * (ks % 3)
        k(f"v_mfma_f32_16x16x32_bf16 {vr(acc1, 4)}, {vr(g, 4)}, {vr(g + 8, 4)}, {vr(acc1, 4)}")
        k(f"v_mfma_f32_16x16x32_bf16 {vr(acc2, 4)}, {vr(g + 4, 4)}, {vr(g + 8, 4)}, {vr(acc2, 4)}")
    x = fr
    k(f"""; Dskip joins lag 0 (tile 0, lane 0, register 0)
s_and_b32 s{t + 1}, s{S_WAVE}, 1
v_or_b32 v{x}, s{t + 1}, v{V_LANE}
v_cmp_eq_u32 vcc, 0, v{x}
v_cndmask_b32 v{x}, 0, v{dsk}, vcc
s_lshr_b32 s{t}, s{S_WAVE}, 1
s_mul_i32 s{t}, s{t}, {KCH}
s_add_u32 s{t}, s{t}, {KC}
v_lshl_add_u32 v{x + 1}, v{V_LANE}, 3, s{t}
s_lshl_b32 s{t + 1}, s{t + 1}, 10
v_add_u32 v{x + 2}, s{t + 1}, v{x + 1}
v_mov_b32 v{x + 8}, 0
v_mov_b32 v{x + 3}, s{t}
v_add_f32 v{acc1}, v{acc1}, v{x}
v_cvt_pk_bf16_f32 v{x + 4}, v{acc1}, v{acc1 + 1}
v_cvt_pk_bf16_f32 v{x + 5}, v{acc1 + 2}, v{acc1 + 3}
v_cvt_pk_bf16_f32 v{x + 6}, v{acc2}, v{acc2 + 1}
v_cvt_pk_bf16_f32 v{x + 7}, v{acc2 + 2}, v{acc2 + 3}
ds_write_b64 v{x + 2}, {vr(x + 4, 2)}
ds_write_b64 v{x + 1}, {vr(x + 6, 2)} offset:512
ds_write_b32 v{x + 3}, v{x + 8} offset:1536
s_waitcnt lgkmcnt(0)
s_barrier""")


def phase_k_expand(k, V, W):
    gi = V + 8
    ix = W
    d = W + 10
    adr = W + 50
    k(f"v_mov_b32 v{ix + 9}, {KC}")
    for j in range(4):
        k(f"v_add_u32_sdwa v{ix + 2 * j}, v{ix + 9}, v{gi + j} dst_sel:DWORD dst_unused:UNUSED_PAD src0_sel:DWORD src1_sel:WORD_0")
        k(f"v_add_u32_sdwa v{ix + 2 * j + 1}, v{ix + 9}, v{gi + j} dst_sel:DWORD dst_unused:UNUSED_PAD src0_sel:DWORD src1_sel:WORD_1")
    k(f"v_add_u32 v{ix + 8}, v{ix + 9}, v{V + 12}")
    k(f"v_lshlrev_b32 v{adr}, 4, v0")
    for ch in range(2):
        dd = d + 18 * ch
        for j in range(9):
            k(f"ds_read_u16 v{dd + j}, v{ix + j} offset:{ch * KCH}")
    k(f"v_add_u32 v{adr}, {CV}, v{adr}")
    for ch in range(2):
        dd = d + 18 * ch
        pk = dd + 10
        assert pk % 2 == 0
        for j in range(4):
            k(f"v_lshl_or_b32 v{pk + j}, v{dd + 2 * j + 1}, 16, v{dd + 2 * j}")
        for j in range(4):
            k(f"v_lshl_or_b32 v{pk + 4 + j}, v{dd + 2 * j + 2}, 16, v{dd + 2 * j + 1}")
        k(f"ds_write_b128 v{adr}, {vr(pk, 4)} offset:{ch * 2 * CPY}")
        k(f"ds_write_b128 v{adr}, {vr(pk + 4, 4)} offset:{ch * 2 * CPY + CPY}")
    z = d + 36
    a, b = ix, ix + 1
    assert z % 2 == 0
    k(f"""v_mov_b32 v{z}, 0
v_mov_b32 v{z + 1}, 0
v_mov_b32 v{z + 2}, 0
v_mov_b32 v{z + 3}, 0
v_lshrrev_b32 v{a}, 2, v0
v_mul_u32_u24 v{a}, {CPY}, v{a}
v_and_b32 v{b}, 3, v0
v_lshl_add_u32 v{a}, v{b}, 4, v{a}
v_add_u32 v{a}, {CV + 4096}, v{a}
v_subrev_u32 v{b}, 16, v0
v_cmp_le_u32 vcc, 30, v{b}
v_cndmask_b32 v{ix + 2}, 0, 1, vcc
v_mul_u32_u24 v{ix + 2}, {UCH - 480}, v{ix + 2}
v_lshl_add_u32 v{b}, v{b}, 4, v{ix + 2}
v_add_u32 v{b}, {UB}, v{b}
v_cmp_gt_u32 vcc, 16, v0
v_cndmask_b32 v{a}, v{b}, v{a}, vcc
v_cmp_gt_u32 vcc, 76, v0
s_and_saveexec_b64 {sr(S_T0)}, vcc
ds_write_b128 v{a}, {vr(z, 4)}
s_mov_b64 exec, {sr(S_T0)}""")


G1_ACC = 128
G1_FR = 192
G1_AD = 224


def g1_role(k):
    t = S_T0
    k(f"""; ---- role in GEMM1
s_mul_i32 s{t}, s{S_J}, 37
s_lshr_b32 s{t}, s{t}, 8
s_mul_i32 s{t + 1}, s{t}, 7
s_sub_u32 s{t + 1}, s{S_J}, s{t + 1}
s_lshr_b32 s{S_RB}, s{S_XCD}, 1
s_lshl_b32 s{S_RB}, s{S_RB}, 2
s_add_u32 s{S_RB}, s{S_RB}, s{t}
s_and_b32 s{S_FS}, s{S_XCD}, 1
s_mul_i32 s{S_FS}, s{S_FS}, 7
s_add_u32 s{S_FS}, s{S_FS}, s{t + 1}
s_lshl_b32 s{S_ROT}, s{t}, 1
s_add_u32 s{S_ROT}, s{S_ROT}, s{t + 1}
s_and_b32 s{S_ROT}, s{S_ROT}, 7""")


S_G1X, S_G1W, S_G1C, S_G1SL = 90, 91, 92, 93
S_G1RD = 94


G1_XV = G1_AD
G1_WV = G1_AD + 20


def g1_setup(k):
    t = S_T0
    xa, wa, tmp = G1_XV, G1_WV, G1_AD + 24
    k(f"""; ---- G1: DMA addresses
v_lshrrev_b32 v{tmp}, 3, v{V_LANE}
v_lshrrev_b32 v{tmp + 1}, 1, v{tmp}
v_and_b32 v{tmp + 2}, 7, v{V_LANE}
v_xor_b32 v{tmp + 2}, v{tmp + 2}, v{tmp + 1}
v_lshlrev_b32 v{tmp}, 10, v{tmp}
v_lshl_add_u32 v{xa}, v{tmp + 2}, 4, v{tmp}
v_xor_b32 v{xa + 1}, 64, v{xa}
v_add_u32 v{xa + 2}, {2 * 7168}, v{xa}
v_add_u32 v{xa + 1}, 7168, v{xa + 1}
v_add_u32 v{xa + 3}, {2 * 7168}, v{xa + 1}
v_lshrrev_b32 v{tmp}, 4, v{V_LANE}
v_and_b32 v{tmp + 1}, 15, v{V_LANE}
v_lshlrev_b32 v{tmp + 2}, 2, v{tmp}
v_xor_b32 v{tmp + 1}, v{tmp + 1}, v{tmp + 2}
v_mul_u32_u24 v{tmp}, 3584, v{tmp}
v_lshl_add_u32 v{wa}, v{tmp + 1}, 4, v{tmp}
v_add_u32 v{wa + 1}, {14336 - 1024}, v{wa}
v_add_u32 v{wa + 2}, {2 * (14336 - 1024)}, v{wa}
v_add_u32 v{wa + 3}, {3 * (14336 - 1024)}, v{wa}
s_lshl_b32 s{t}, s{S_RB}, 7
s_lshl_b32 s{t + 1}, s{S_WAVE}, 5
s_add_u32 s{t}, s{t}, s{t + 1}
s_lshl_b32 s{S_G1X}, s{t}, 10
s_lshl_b32 s{t}, s{S_FS}, 8
s_mul_i32 s{t + 1}, s{S_WAVE}, {16 * 3584}
s_add_u32 s{S_G1W}, s{t}, s{t + 1}""")


def g1_bias_load(k, B):
    t = S_T0
    tmp = B + 16
    k(f"""; ---- G1: bias
s_lshl_b32 s{t}, s{S_FS}, 7
s_and_b32 s{t + 1}, s{S_WAVE}, 1
s_lshl_b32 s{t + 1}, s{t + 1}, 6
s_add_u32 s{t}, s{t}, s{t + 1}
s_lshl_b32 s{t}, s{t}, 1
v_lshrrev_b32 v{tmp}, 5, v{V_LANE}
v_lshl_add_u32 v{tmp}, v{tmp}, 3, s{t}""")
    for fb in range(2):
        for q in range(4):
            k(f"global_load_dwordx2 {vr(B + 2 * (4 * fb + q), 2)}, v{tmp}, {sr(S_B1)} offset:{64 * fb + 16 * q}")


def g1_issue_ops(k, cexpr_s):
    t = S_T0

    def setup():
        k(f"""s_add_u32 s{t}, s{cexpr_s}, s{S_ROT}
s_and_b32 s{t}, s{t}, 7
s_lshl_b32 s{t + 1}, s{t}, 7
s_add_u32 s{t + 1}, s{t + 1}, s{S_G1X}
s_mul_i32 s{t + 2}, s{t}, {64 * 3584}
s_add_u32 s{t + 2}, s{t + 2}, s{S_G1W}
s_lshl_b32 s{t + 3}, s{S_WAVE}, 12
s_add_u32 s{t + 3}, s{t + 3}, s{S_G1SL}
s_mov_b32 m0, s{t + 3}""")
    ops = []
    for i in range(4):
        ops.append(lambda i=i: k(f"buffer_load_dwordx4 v{G1_XV + i}, {sr(R_X, 4)}, s{t + 1} offen offset:{1024 * i} lds"))
    for i in range(4):
        def opw(i=i):
            k(f"buffer_load_dwordx4 v{G1_WV + i}, {sr(R_W1, 4)}, s{t + 2} offen offset:{1024 * i} lds")
        ops.append(opw)
    msw = lambda: k(f"s_add_u32 m0, s{t + 3}, 16384")
    return setup, ops, msw


def g1_issue(k, c):
    k(f"s_mov_b32 s{S_G1C}, {c}\ns_mov_b32 s{S_G1SL}, {c * SLOT}")
    setup, ops, msw = g1_issue_ops(k, S_G1C)
    setup()
    for i, o in enumerate(ops):
        if i == 4:
            msw()
            k("s_nop 0")
        o()


def g1_prologue_dma(k):
    for c in range(NS - 1):
        g1_issue(k, c)


def g1_bias(k, B):
    k("; ---- G1: accumulators start from the bias")
    for fb in range(2):
        for q in range(4):
            for d in range(2):
                src = B + 2 * (4 * fb + q) + d
                for tb in range(2):
                    a = G1_ACC + (fb * 2 + tb) * 16 + 4 * q + 2 * d
                    k(f"v_lshlrev_b32 v{a}, 16, v{src}")
                    k(f"v_and_b32 v{a + 1}, 0xffff0000, v{src}")


def g1_main(k, after_c1=None):
    t = S_T0
    xr = G1_AD + 4
    wr = G1_AD + 8
    xc = G1_AD + 10
    wc = G1_AD + 14
    tmp = G1_AD + 16
    k(f"""; ---- G1: LDS read addresses
v_and_b32 v{tmp}, 31, v{V_LANE}
v_bfe_u32 v{tmp + 1}, v{V_LANE}, 1, 3
v_bfe_u32 v{tmp + 3}, v{V_LANE}, 4, 1
v_lshrrev_b32 v{tmp + 2}, 5, v{V_LANE}
v_lshrrev_b32 v{tmp + 1}, 1, v{tmp}
v_and_b32 v{tmp + 1}, 7, v{tmp + 1}
v_xor_b32 v{tmp + 1}, v{tmp + 1}, v{tmp + 2}
s_lshr_b32 s{t}, s{S_WAVE}, 1
s_lshl_b32 s{t}, s{t}, 6
v_add_u32 v{tmp}, s{t}, v{tmp}
v_lshlrev_b32 v{tmp}, 7, v{tmp}
v_lshl_add_u32 v{xr}, v{tmp + 1}, 4, v{tmp}
v_xor_b32 v{xr + 1}, 32, v{xr}
v_xor_b32 v{xr + 2}, 64, v{xr}
v_xor_b32 v{xr + 3}, 96, v{xr}
v_bfe_u32 v{tmp}, v{V_LANE}, 2, 2
v_lshl_add_u32 v{tmp + 1}, v{tmp + 2}, 3, v{tmp}
v_lshlrev_b32 v{tmp + 1}, 8, v{tmp + 1}
s_and_b32 s{t}, s{S_WAVE}, 1
s_lshl_b32 s{t}, s{t}, 1
v_xor_b32 v{tmp}, s{t}, v{tmp}
v_lshlrev_b32 v{tmp}, 2, v{tmp}
v_lshl_add_u32 v{tmp}, v{tmp + 3}, 1, v{tmp}
v_bfe_u32 v{tmp + 2}, v{V_LANE}, 1, 1
v_add_u32 v{tmp}, v{tmp}, v{tmp + 2}
v_lshl_add_u32 v{tmp + 1}, v{tmp}, 4, v{tmp + 1}
v_and_b32 v{tmp + 2}, 1, v{V_LANE}
v_lshl_add_u32 v{tmp + 1}, v{tmp + 2}, 3, v{tmp + 1}
v_add_u32 v{wr}, 16384, v{tmp + 1}
v_xor_b32 v{wr + 1}, 64, v{wr}
s_mov_b32 s{S_G1C}, 0
s_mov_b32 s{S_G1RD}, 0
s_mov_b32 s{S_G1SL}, {(NS - 1) * SLOT}""")
    loop = k.newlabel("L_g1")

    def rdA(ks, st, fb):
        if "noread" in EXP:
            return
        f = G1_FR + 16 * st
        for j in range(2):
            k(f"ds_read_b64_tr_b16 {vr(f + 4 * fb + 2 * j, 2)}, v{wc + fb} offset:{4096 * ks + 1024 * j}")

    def rdB(ks, st, tb):
        if "noread" in EXP:
            return
        f = G1_FR + 16 * st
        k(f"ds_read_b128 {vr(f + 8 + 4 * tb, 4)}, v{xc + ks} offset:{4096 * tb}")

    def mfma(st, fb, tb):
        f = G1_FR + 16 * st
        a = G1_ACC + (fb * 2 + tb) * 16
        if "nomfma" not in EXP:
            k(f"v_mfma_f32_32x32x16_bf16 {vr(a, 16)}, {vr(f + 4 * fb, 4)}, {vr(f + 8 + 4 * tb, 4)}, {vr(a, 16)}")

    def set_addr():
        for i in range(4):
            k(f"v_add_u32 v{xc + i}, s{S_G1RD}, v{xr + i}")
        for i in range(2):
            k(f"v_add_u32 v{wc + i}, s{S_G1RD}, v{wr + i}")

    def next_slot(reg):
        k(f"""s_add_u32 s{reg}, s{reg}, {SLOT}
s_cmp_eq_u32 s{reg}, {NS * SLOT}
s_cselect_b32 s{reg}, 0, s{reg}""")

    def step(st, rk, g3, g4):
        mfma(st, 0, 0)
        if rk is not None:
            rdA(rk, 1 - st, 0); rdB(rk, 1 - st, 0)
        mfma(st, 0, 1)
        if rk is not None:
            rdB(rk, 1 - st, 1); rdA(rk, 1 - st, 1)
        mfma(st, 1, 0)
        for f in g3:
            f()
        mfma(st, 1, 1)
        for f in g4:
            f()

    def body(dma, wait, nxt):
        dma = dma and "nodma" not in EXP
        if dma:
            k(f"s_add_u32 s{t + 4}, s{S_G1C}, {NS - 1}")
            setup, ops, msw = g1_issue_ops(k, t + 4)
            setup()
            ops = [[o] for o in ops]
            ops[3] = ops[3] + [msw]
        else:
            ops = [[]] * 8
        step(0, 1, ops[0], ops[1])
        step(1, 2, ops[2], ops[3])
        if nxt:
            step(0, 3, ops[4], ops[5] + [lambda: next_slot(S_G1RD), set_addr])
            k(f"s_waitcnt vmcnt({wait}) lgkmcnt(0)\ns_barrier")
            if after_c1:
                after_c1(k)
            step(1, 0, ops[6], ops[7] + ([lambda: next_slot(S_G1SL)] if dma else []))
        else:
            step(0, 3, [], [])
            step(1, None, [], [])

    stamp(k, 20)
    k(f"s_waitcnt vmcnt({8 * (NS - 2)})\ns_barrier")
    stamp(k, 21)
    set_addr()
    rdA(0, 0, 0); rdB(0, 0, 0); rdB(0, 0, 1); rdA(0, 0, 1)
    entry = list(k.lg)
    k(f"{loop}:")
    body(True, 6 + 8 * (NS - 3), True)
    assert k.lg == entry or "noread" in EXP, (k.lg, entry)
    k(f"""s_add_u32 s{S_G1C}, s{S_G1C}, 1
s_cmp_lt_u32 s{S_G1C}, {9 - NS}
s_cbranch_scc1 {loop}""")
    stamp(k, 22)
    hook, after_c1 = after_c1, None
    if NS == 3:
        body(False, 0, True)
    else:
        loop2 = k.newlabel("L_g1b")
        k(f"{loop2}:")
        body(False, 0, True)
        k(f"""s_add_u32 s{S_G1C}, s{S_G1C}, 1
s_cmp_lt_u32 s{S_G1C}, 7
s_cbranch_scc1 {loop2}""")
    body(False, 0, False)
    k.vm = []


def g1_epilogue(k, fill=None):
    fill = list(fill or [])
    t = S_T0
    T = G1_FR
    P = G1_FR + 16
    adr = G1_AD + 24
    k(f"""; ---- G1: mish and store
s_mov_b32 s{t + 6}, {LOG2E}
s_mov_b32 s{t + 7}, {LOG2E}
s_lshl_b32 s{t}, s{S_RB}, 2
s_and_b32 s{t + 1}, s{S_WAVE}, 2
s_add_u32 s{t}, s{t}, s{t + 1}
s_mul_i32 s{t}, s{t}, 112
s_lshl_b32 s{t + 1}, s{S_FS}, 3
s_add_u32 s{t}, s{t}, s{t + 1}
s_and_b32 s{t + 1}, s{S_WAVE}, 1
s_lshl_b32 s{t + 1}, s{t + 1}, 2
s_add_u32 s{t}, s{t}, s{t + 1}
s_lshl_b32 s{t}, s{t}, 10
s_add_u32 s{t}, s{t}, {WS_H}
s_add_u32 s{t + 1}, s{t}, {112 * 1024}
v_lshlrev_b32 v{adr}, 4, v{V_LANE}""")
    assert (t + 6) % 2 == 0
    k.tag = "hstore"
    n = 0
    for tb in range(2):
        for fb in range(2):
            for qq in range(2):
                a = G1_ACC + (fb * 2 + tb) * 16 + 8 * qq
                p = P + 4 * (n % 2)
                n += 1
                for j in range(4):
                    k(f"v_pk_mul_f32 {vr(T + 2 * j, 2)}, {vr(a + 2 * j, 2)}, {sr(t + 6)}")
                for j in range(8):
                    k(f"v_exp_f32 v{T + j}, v{T + j}")
                    if fill and j in (1, 5):
                        tg = k.tag
                        fill.pop(0)()
                        k.tag = tg
                for j in range(4):
                    k(f"v_pk_add_f32 {vr(T + 2 * j, 2)}, {vr(T + 2 * j, 2)}, 1.0 op_sel_hi:[1,0]")
                for j in range(4):
                    k(f"v_pk_fma_f32 {vr(T + 2 * j, 2)}, {vr(T + 2 * j, 2)}, {vr(T + 2 * j, 2)}, 1.0 op_sel_hi:[1,1,0]")
                for j in range(8):
                    k(f"v_rcp_f32 v{T + j}, v{T + j}")
                    if fill and j in (1, 5):
                        tg = k.tag
                        fill.pop(0)()
                        k.tag = tg
                for j in range(4):
                    k(f"v_pk_fma_f32 {vr(T + 2 * j, 2)}, {vr(T + 2 * j, 2)}, -2.0, 1.0 op_sel_hi:[1,0,0]")
                for j in range(4):
                    k(f"v_pk_mul_f32 {vr(T + 2 * j, 2)}, {vr(T + 2 * j, 2)}, {vr(a + 2 * j, 2)}")
                for j in range(4):
                    k(f"v_cvt_pk_bf16_f32 v{p + j}, v{T + 2 * j}, v{T + 2 * j + 1}")
                k(f"buffer_store_dwordx4 {vr(p, 4)}, v{adr}, {sr(R_WS, 4)}, s{t + tb} offen offset:{(2 * fb + qq) * 1024} sc1")
    k.tag = None


def phase_gate(k):
    t = S_T0
    A, B, acc, tmp = 64, 128, 192, 196
    k(f"""; ---- gate: g = sigmoid(x . gate_w) for 64 rows
s_lshl_b32 s{t}, s{S_XCD}, 2
s_add_u32 s{t}, s{t}, s{S_J}
s_sub_u32 s{t}, s{t}, 28
s_lshl_b32 s{t + 1}, s{t}, 6
s_lshl_b32 s{t + 2}, s{S_WAVE}, 4
s_add_u32 s{t + 1}, s{t + 1}, s{t + 2}
s_lshl_b32 s{t + 2}, s{t + 1}, 10
v_and_b32 v{tmp}, 15, v{V_LANE}
v_lshlrev_b32 v{tmp}, 10, v{tmp}
v_lshrrev_b32 v{tmp + 1}, 4, v{V_LANE}
v_lshlrev_b32 v{tmp + 1}, 4, v{tmp + 1}
v_add_u32 v{tmp}, v{tmp}, v{tmp + 1}""")
    for ks in range(16):
        k(f"global_load_dwordx4 {vr(B + 4 * ks, 4)}, v{tmp + 1}, {sr(S_GW)} offset:{64 * ks}")
        k(f"buffer_load_dwordx4 {vr(A + 4 * ks, 4)}, v{tmp}, {sr(R_X, 4)}, s{t + 2} offen offset:{64 * ks}")
    for i in range(4):
        k(f"v_mov_b32 v{acc + i}, 0")
    for ks in range(16):
        k(f"v_mfma_f32_16x16x32_bf16 {vr(acc, 4)}, {vr(A + 4 * ks, 4)}, {vr(B + 4 * ks, 4)}, {vr(acc, 4)}")
    for i in range(4):
        k(f"v_mul_f32 v{acc + i}, {f32(-1.4426950408889634)}, v{acc + i}")
    for i in range(4):
        k(f"v_exp_f32 v{acc + i}, v{acc + i}")
    for i in range(4):
        k(f"v_add_f32 v{acc + i}, 1.0, v{acc + i}")
    for i in range(4):
        k(f"v_rcp_f32 v{acc + i}, v{acc + i}")
    skip = k.newlabel("L_gate_skip")
    k(f"""s_lshl_b32 s{t + 1}, s{t + 1}, 2
s_add_u32 s{t + 1}, s{t + 1}, {WS_G}
v_and_b32 v{tmp}, 15, v{V_LANE}
v_cmp_eq_u32 vcc, 0, v{tmp}
s_and_saveexec_b64 {sr(t + 4)}, vcc
s_cbranch_execz {skip}
buffer_store_dwordx4 {vr(acc, 4)}, v{tmp + 1}, {sr(R_WS, 4)}, s{t + 1} offen sc1
{skip}:
s_mov_b64 exec, {sr(t + 4)}""")


def spare_w2_prefetch(k, n):
    t = S_T0
    D, tmp = 64, 60
    k(f"""; ---- spare: pull W2 towards this XCD
s_sub_u32 s{t}, s{S_J}, 28
s_mul_i32 s{t}, s{t}, 448
s_mul_i32 s{t + 1}, s{S_XCD}, 56
s_add_u32 s{t + 1}, s{t + 1}, s{S_WAVE}
v_lshlrev_b32 v{tmp}, 4, v{V_LANE}""")
    loop = k.newlabel("L_pf")
    k(f"""s_mov_b32 s{t + 2}, 0
{loop}:""")
    k.auto = False
    for i in range(8):
        k(f"""s_add_u32 s{t + 3}, s{t + 1}, s{t}
s_lshl_b32 s{t + 3}, s{t + 3}, 10
buffer_load_dwordx4 {vr(D + 4 * i, 4)}, v{tmp}, {sr(R_W2, 4)}, s{t + 3} offen
s_add_u32 s{t + 1}, s{t + 1}, 4
s_cmp_ge_u32 s{t + 1}, 448
s_cselect_b32 s{t + 4}, 448, 0
s_sub_u32 s{t + 1}, s{t + 1}, s{t + 4}""")
    k(f"""s_waitcnt vmcnt(8)
s_add_u32 s{t + 2}, s{t + 2}, 8
s_cmp_lt_u32 s{t + 2}, {n}
s_cbranch_scc1 {loop}
s_waitcnt vmcnt(0)""")
    k.auto = True
    k.forget()


C_ACC = 64
C_A = 96
C_B = 128
C_AD = 160


def conv_uload(k, V):
    t = S_T0
    k(f"""; ---- C: load u^T rows
s_lshl_b32 s{t}, s2, 1
s_lshr_b32 s{t + 1}, s{S_WAVE}, 1
s_add_u32 s{t}, s{t}, s{t + 1}
s_lshl_b32 s{t}, s{t}, 12
s_and_b32 s{t + 1}, s{S_WAVE}, 1
s_lshl_b32 s{t + 1}, s{t + 1}, 11
s_add_u32 s{t}, s{t}, s{t + 1}
s_add_u32 s{t}, s{t}, {WS_UT}
v_lshlrev_b32 v{V + 8}, 4, v{V_LANE}
buffer_load_dwordx4 {vr(V, 4)}, v{V + 8}, {sr(R_WS, 4)}, s{t} offen sc1
buffer_load_dwordx4 {vr(V + 4, 4)}, v{V + 8}, {sr(R_WS, 4)}, s{t} offen offset:1024 sc1""")


def conv_ustore(k, V):
    t = S_T0
    k(f"""s_lshr_b32 s{t}, s{S_WAVE}, 1
s_mul_i32 s{t}, s{t}, {UCH}
s_and_b32 s{t + 1}, s{S_WAVE}, 1
s_lshl_b32 s{t + 1}, s{t + 1}, 11
s_add_u32 s{t}, s{t}, s{t + 1}
s_add_u32 s{t}, s{t}, {UB + 480}
v_lshl_add_u32 v{V + 8}, v{V_LANE}, 4, s{t}
ds_write_b128 v{V + 8}, {vr(V, 4)}
ds_write_b128 v{V + 8}, {vr(V + 4, 4)} offset:1024
s_waitcnt lgkmcnt(0)
s_barrier""")


def conv_main(k, hooks=None):
    t = S_T0
    aa, ba, tmp = C_AD, C_AD + 8, C_AD + 9
    k(f"""; ---- C: addresses
v_and_b32 v{tmp}, 15, v{V_LANE}
v_lshrrev_b32 v{tmp + 1}, 4, v{V_LANE}
v_lshlrev_b32 v{tmp + 2}, 3, v{tmp + 1}
v_sub_u32 v{tmp + 2}, v{tmp + 2}, v{tmp}
v_add_u32 v{tmp + 2}, 2031, v{tmp + 2}
v_and_b32 v{tmp + 3}, 1, v{tmp + 2}
v_mul_u32_u24 v{tmp + 3}, {CPY - 2}, v{tmp + 3}
v_lshl_add_u32 v{tmp + 2}, v{tmp + 2}, 1, v{tmp + 3}
s_lshr_b32 s{t}, s{S_WAVE}, 1
s_mul_i32 s{t + 1}, s{t}, {2 * CPY}
s_and_b32 s{t + 2}, s{S_WAVE}, 1
s_lshl_b32 s{t + 2}, s{t + 2}, 8
s_add_u32 s{t + 2}, s{t + 2}, 192
s_sub_u32 s{t + 1}, s{t + 1}, s{t + 2}
s_add_u32 s{t + 1}, s{t + 1}, {CV}
v_add_u32 v{aa}, s{t + 1}, v{tmp + 2}""")
    for p in range(1, 8):
        k(f"v_subrev_u32 v{aa + p}, {512 * p}, v{aa}")
    k(f"""s_mul_i32 s{t + 1}, s{t}, {UCH}
s_sub_u32 s{t + 1}, s{t + 1}, s{t + 2}
s_add_u32 s{t + 1}, s{t + 1}, {UB + 448}
v_lshlrev_b32 v{tmp}, 5, v{tmp}
v_lshl_add_u32 v{tmp}, v{tmp + 1}, 4, v{tmp}
v_add_u32 v{ba}, s{t + 1}, v{tmp}""")

    def rdA(p, qq):
        o = 16 * (3 - qq)
        k(f"ds_read2_b32 {vr(C_A + 4 * p, 2)}, v{aa + p} offset0:{o} offset1:{o + 1}")
        k(f"ds_read2_b32 {vr(C_A + 4 * p + 2, 2)}, v{aa + p} offset0:{o + 2} offset1:{o + 3}")

    def rdB(r, qq):
        k(f"ds_read_b128 {vr(C_B + 4 * r, 4)}, v{ba} offset:{512 * r + 64 * (3 - qq)}")

    k("; ---- C: main")
    for r in range(7, -1, -1):
        rdB(r, 0)
        rdA(7 - r, 0)
    fill = []
    nm, every = 0, 1
    for qq in range(4):
        if hooks and qq in hooks:
            fill = hooks[qq]() or []
            nm = 0
            every = max(1, (36 * (4 - qq)) // max(1, len(fill)))
        for p in range(8):
            for c in range(7, p - 1, -1):
                a = C_ACC + 4 * c
                srcc = 0 if (qq == 0 and p == 0) else vr(a, 4)
                k(f"v_mfma_f32_16x16x32_bf16 {vr(a, 4)}, {vr(C_A + 4 * p, 4)}, {vr(C_B + 4 * (c - p), 4)}, {srcc}")
                nm += 1
                if fill and nm % every == 0:
                    fill.pop(0)()
            if qq < 3:
                rdB(7 - p, qq + 1)
                rdA(p, qq + 1)
    for f in fill:
        f()


def conv_finish(k):
    t = S_T0
    adr, rd, F = C_AD, C_AD + 1, C_A
    k(f"""; ---- C: reduce and store
s_waitcnt lgkmcnt(0)
s_barrier
s_lshl_b32 s{t}, s{S_WAVE}, 12
s_add_u32 s{t}, s{t}, {CV}
v_lshl_add_u32 v{adr}, v{V_LANE}, 4, s{t}
s_xor_b32 s{t + 1}, s{S_WAVE}, 1
s_lshl_b32 s{t + 1}, s{t + 1}, 12
s_add_u32 s{t + 1}, s{t + 1}, {CV}
v_lshl_add_u32 v{rd}, v{V_LANE}, 4, s{t + 1}
s_and_b32 s{t + 2}, s{S_WAVE}, 1""")
    odd, join = k.newlabel("L_cv_odd"), k.newlabel("L_cv_join")
    k(f"s_cmp_eq_u32 s{t + 2}, 1\ns_cbranch_scc1 {odd}")
    k.forget()
    for c in range(4):
        k(f"ds_write_b128 v{adr}, {vr(C_ACC + 16 + 4 * c, 4)} offset:{1024 * c}")
    for i in range(16):
        k(f"v_mov_b32 v{F + i}, v{C_ACC + i}")
    k(f"s_branch {join}\n{odd}:")
    for c in range(4):
        k(f"ds_write_b128 v{adr}, {vr(C_ACC + 4 * c, 4)} offset:{1024 * c}")
    for i in range(16):
        k(f"v_mov_b32 v{F + i}, v{C_ACC + 16 + i}")
    k(f"{join}:\ns_waitcnt lgkmcnt(0)\ns_barrier")
    k.forget()
    G = C_B
    for c in range(4):
        k(f"ds_read_b128 {vr(G + 4 * c, 4)}, v{rd} offset:{1024 * c}")
    k(f"""s_lshl_b32 s{t}, s2, 1
s_lshr_b32 s{t + 1}, s{S_WAVE}, 1
s_add_u32 s{t}, s{t}, s{t + 1}
s_lshl_b32 s{t}, s{t}, 12
s_lshl_b32 s{t + 2}, s{t + 2}, 11
s_add_u32 s{t}, s{t}, s{t + 2}
s_add_u32 s{t}, s{t}, {WS_AT}
v_and_b32 v{adr}, 15, v{V_LANE}
v_lshlrev_b32 v{adr}, 5, v{adr}
v_lshrrev_b32 v{rd}, 4, v{V_LANE}
v_lshl_add_u32 v{adr}, v{rd}, 3, v{adr}""")
    k.tag = "astore"
    for c in range(4):
        for j in range(2):
            k(f"v_pk_add_f32 {vr(F + 4 * c + 2 * j, 2)}, {vr(F + 4 * c + 2 * j, 2)}, {vr(G + 4 * c + 2 * j, 2)}")
        P = C_ACC + 2 * c
        k(f"v_cvt_pk_bf16_f32 v{P}, v{F + 4 * c}, v{F + 4 * c + 1}")
        k(f"v_cvt_pk_bf16_f32 v{P + 1}, v{F + 4 * c + 2}, v{F + 4 * c + 3}")
        k(f"buffer_store_dwordx2 {vr(P, 2)}, v{adr}, {sr(R_WS, 4)}, s{t} offen offset:{512 * c} sc1")
    k.tag = None


S_RBP, S_DB = 95, 96
S_G2W, S_G2H0, S_G2H1, S_G2L = 97, 98, 99, 89
G2_DEPTH = 7
G2_H = 0
G2_ACC = 64
G2_FR = 192
G2_AD = 224
RED = 0
ATL = 49152


S_SEGH0, S_SEGH1, S_SEGW = 4, 8, 12


def g2_role(k):
    t = S_T0
    wv, hv, ra, tmp = G2_AD, G2_AD + 2, G2_AD + 4, G2_AD + 6
    k(f"""; ---- role in GEMM2
s_lshr_b32 s{t}, s{S_J}, 3
s_lshl_b32 s{S_RBP}, s{S_XCD}, 2
s_add_u32 s{S_RBP}, s{S_RBP}, s{t}
s_and_b32 s{S_DB}, s{S_J}, 7
s_mul_i32 s{t}, s{S_WAVE}, {28 * 16 * 1024}
s_lshl_b32 s{t + 1}, s{S_DB}, 7
s_add_u32 s{S_G2W}, s{t}, s{t + 1}
s_lshr_b32 s{t}, s{S_WAVE}, 1
s_lshl_b32 s{t + 1}, s{S_RBP}, 1
s_add_u32 s{t + 2}, s{t + 1}, s{t}
s_xor_b32 s{t}, s{t}, 1
s_add_u32 s{t + 3}, s{t + 1}, s{t}
s_mul_i32 s{t}, s{S_WAVE}, 28
s_mul_i32 s{t + 2}, s{t + 2}, 112
s_mul_i32 s{t + 3}, s{t + 3}, 112
s_add_u32 s{t + 2}, s{t + 2}, s{t}
s_add_u32 s{t + 3}, s{t + 3}, s{t}
s_lshl_b32 s{t + 2}, s{t + 2}, 10
s_lshl_b32 s{t + 3}, s{t + 3}, 10
s_add_u32 s{S_G2H0}, s{t + 2}, {WS_H}
s_add_u32 s{S_G2H1}, s{t + 3}, {WS_H}
s_and_b32 s{t}, s{S_DB}, 1
s_lshl_b32 s{t}, s{t}, 1
s_add_u32 s{t}, s{t}, s{S_RBP}""")
    for j in range(4):
        k(f"""s_add_u32 s{t + 1}, s{t}, {j}
s_and_b32 s{t + 1}, s{t + 1}, 3
s_mul_i32 s{t + 2}, s{t + 1}, {7 * 1024}
s_add_u32 s{S_SEGH0 + j}, s{S_G2H0}, s{t + 2}
s_add_u32 s{S_SEGH1 + j}, s{S_G2H1}, s{t + 2}
s_lshl_b32 s{t + 2}, s{t + 2}, 4
s_add_u32 s{S_SEGW + j}, s{S_G2W}, s{t + 2}""")
    k(f"""v_lshrrev_b32 v{tmp}, 3, v{V_LANE}
v_bfe_u32 v{tmp + 1}, v{V_LANE}, 4, 1
v_lshlrev_b32 v{tmp + 1}, 2, v{tmp + 1}
v_and_b32 v{tmp + 2}, 7, v{V_LANE}
v_xor_b32 v{tmp + 1}, v{tmp + 1}, v{tmp + 2}
v_lshlrev_b32 v{tmp}, 10, v{tmp}
v_lshl_add_u32 v{wv}, v{tmp + 1}, 4, v{tmp}
v_add_u32 v{wv + 1}, 7168, v{wv}
v_lshlrev_b32 v{hv}, 4, v{V_LANE}
v_add_u32 v{hv + 1}, 4096, v{hv}
v_bfe_u32 v{tmp}, v{V_LANE}, 2, 2
v_lshrrev_b32 v{tmp + 1}, 5, v{V_LANE}
v_lshl_add_u32 v{tmp + 1}, v{tmp + 1}, 2, v{tmp}
v_lshlrev_b32 v{tmp + 1}, 7, v{tmp + 1}
v_lshrrev_b32 v{tmp}, 1, v{tmp}
s_and_b32 s{t}, s{S_WAVE}, 1
v_xor_b32 v{tmp}, s{t}, v{tmp}
v_lshl_add_u32 v{tmp + 1}, v{tmp}, 6, v{tmp + 1}
v_bfe_u32 v{tmp}, v{V_LANE}, 4, 1
v_lshl_add_u32 v{tmp + 1}, v{tmp}, 5, v{tmp + 1}
v_and_b32 v{tmp}, 3, v{V_LANE}
v_lshl_add_u32 v{tmp + 1}, v{tmp}, 3, v{tmp + 1}
s_mul_i32 s{S_G2L}, s{S_WAVE}, {W2STRIDE}
v_add_u32 v{ra}, s{S_G2L}, v{tmp + 1}
v_xor_b32 v{ra + 1}, 64, v{ra}""")


S_W2OFF = 87


def g2_wdma_ops(k, ks):
    wv = G2_AD
    j, o = divmod(ks, 7)

    def op(i):
        k.tag = ("w2", ks)
        if i == 0:
            k(f"""s_add_u32 m0, s{S_G2L}, {(ks % W2R) * 2048}
s_add_u32 s{S_W2OFF}, s{S_SEGW + j}, {o * 16384}""")
        k(f"buffer_load_dwordx4 v{wv + i}, {sr(R_W2, 4)}, s{S_W2OFF} offen offset:{1024 * i} lds")
        k.tag = None
    return [lambda: op(0), lambda: op(1)]


def g2_wdma(k, ks):
    for o in g2_wdma_ops(k, ks):
        o()


def g2_hload_ops(k, ks):
    hv = G2_AD + 2
    h = G2_H + 8 * (ks % G2_DEPTH)
    j, o = divmod(ks, 7)

    def op(i):
        seg = (S_SEGH0, S_SEGH1)[i] + j
        k(f"buffer_load_dwordx4 {ar(h + 4 * i, 4)}, v{hv + (o >= 4)}, {sr(R_WS, 4)}, s{seg} offen offset:{(o % 4) * 1024} sc1")
    return [lambda: op(0), lambda: op(1)]


def g2_hload(k, ks):
    for o in g2_hload_ops(k, ks):
        o()


def g2_zero(k):
    pass


def g2_main(k, hooks=None):
    ra = G2_AD + 4
    hooks = hooks or {}
    k("; ---- G2: main")

    def rd(ks, s):
        f = G2_FR + 8 * (ks % 2)
        for j in range(2):
            k(f"ds_read_b64_tr_b16 {vr(f + 4 * s + 2 * j, 2)}, v{ra + s} offset:{2048 * (ks % W2R) + 1024 * j}")

    def mfma(ks, st, sd):
        f = G2_FR + 8 * (ks % 2)
        h = G2_H + 8 * (ks % G2_DEPTH)
        a = G2_ACC + 16 * (2 * st + sd)
        k(f"v_mfma_f32_32x32x16_bf16 {ar(a, 16)}, {vr(f + 4 * sd, 4)}, {ar(h + 4 * st, 4)}, {ar(a, 16) if ks else 0}")

    k.wait_tag(("w2", 0))
    rd(0, 0); rd(0, 1)
    for ks in range(28):
        nxt = ks + 1 < 28
        if nxt:
            k.wait_tag(("w2", ks + 1))
        hl = g2_hload_ops(k, ks - 1 + G2_DEPTH) if 1 <= ks and ks - 1 + G2_DEPTH < 28 else []
        wl = g2_wdma_ops(k, ks - 1 + W2R) if 1 <= ks and ks - 1 + W2R < 28 else []
        mfma(ks, 0, 0)
        if nxt:
            rd(ks + 1, 0)
        if hl:
            hl[0]()
        mfma(ks, 0, 1)
        if nxt:
            rd(ks + 1, 1)
        if hl:
            hl[1]()
        mfma(ks, 1, 0)
        if wl:
            wl[0]()
        mfma(ks, 1, 1)
        if wl:
            wl[1]()
        if ks in hooks:
            hooks[ks]()


G2_AT = 208
S_ROW0 = 86


def g2_at_load(k):
    t = S_T0
    tmp = G2_AD + 6
    k(f"""s_lshl_b32 s{t}, s{S_DB}, 6
s_lshl_b32 s{t + 1}, s{S_WAVE}, 4
s_add_u32 s{t}, s{t}, s{t + 1}
s_lshl_b32 s{t}, s{t}, 12
s_lshl_b32 s{t + 1}, s{S_RBP}, 7
s_add_u32 s{t}, s{t}, s{t + 1}
s_add_u32 s{t}, s{t}, {WS_AT}
s_add_u32 s{t + 1}, s{t}, {8 * 4096}
v_lshrrev_b32 v{tmp}, 3, v{V_LANE}
v_and_b32 v{tmp + 1}, 7, v{V_LANE}
v_lshlrev_b32 v{tmp + 1}, 4, v{tmp + 1}
v_lshl_add_u32 v{tmp}, v{tmp}, 12, v{tmp + 1}
buffer_load_dwordx4 {vr(G2_AT, 4)}, v{tmp}, {sr(R_WS, 4)}, s{t} offen sc1
buffer_load_dwordx4 {vr(G2_AT + 4, 4)}, v{tmp}, {sr(R_WS, 4)}, s{t + 1} offen sc1
s_lshl_b32 s{S_ROW0}, s{S_RBP}, 6
s_lshr_b32 s{t + 3}, s{S_WAVE}, 1
s_lshl_b32 s{t + 3}, s{t + 3}, 5
s_add_u32 s{S_ROW0}, s{S_ROW0}, s{t + 3}
s_lshl_b32 s{t + 4}, s{S_ROW0}, 2
s_add_u32 s{t + 4}, s{t + 4}, {WS_G}
v_and_b32 v{tmp}, 31, v{V_LANE}
v_lshlrev_b32 v{tmp}, 2, v{tmp}
buffer_load_dword v{G2_AT + 8}, v{tmp}, {sr(R_WS, 4)}, s{t + 4} offen sc1""")


def g2_finish(k):
    t = S_T0
    adr, rd, tmp = G2_AD, G2_AD + 1, G2_AD + 6
    F, G, AT, P = 128, 144, 192, 200
    if not k.single:
        g2_at_load(k)
    k(f"""; ---- G2: cross-wave reduction
v_lshlrev_b32 v{tmp}, 4, v{V_LANE}
s_xor_b32 s{t}, s{S_WAVE}, 1
s_xor_b32 s{t + 1}, s{S_WAVE}, 2
s_xor_b32 s{t + 2}, s{S_WAVE}, 3
s_mul_i32 s{t}, s{t}, 12288
s_mul_i32 s{t + 1}, s{t + 1}, 12288
s_mul_i32 s{t + 2}, s{t + 2}, 12288
s_add_u32 s{t}, s{t}, {RED}
s_add_u32 s{t + 1}, s{t + 1}, {RED + 4096}
s_add_u32 s{t + 2}, s{t + 2}, {RED + 8192}
v_add_u32 v{tmp + 1}, s{t}, v{tmp}
v_add_u32 v{tmp + 2}, s{t + 1}, v{tmp}
v_add_u32 v{tmp + 3}, s{t + 2}, v{tmp}
v_lshrrev_b32 v{adr}, 3, v{V_LANE}
v_mul_u32_u24 v{adr}, {TTP}, v{adr}
v_and_b32 v{rd}, 7, v{V_LANE}
v_lshl_add_u32 v{adr}, v{rd}, 4, v{adr}
s_mul_i32 s{t + 5}, s{S_WAVE}, {16 * TTP}
s_add_u32 s{t + 5}, s{t + 5}, {ATL}
v_add_u32 v{adr}, s{t + 5}, v{adr}
s_waitcnt lgkmcnt(0)
s_barrier""")
    k(f"ds_write_b128 v{adr}, {vr(G2_AT, 4)}")
    k(f"ds_write_b128 v{adr}, {vr(G2_AT + 4, 4)} offset:{8 * TTP}")
    for s in (3, 2, 1):
        for q in range(4):
            k(f"ds_write_b128 v{tmp + s}, {ar(G2_ACC + 16 * s + 4 * q, 4)} offset:{1024 * q}")
    for i in range(16):
        k(f"v_accvgpr_read_b32 v{F + i}, a{G2_ACC + i}")
    k(f"""s_mul_i32 s{t + 5}, s{S_WAVE}, 12288
s_add_u32 s{t + 5}, s{t + 5}, {RED}
v_add_u32 v{rd}, s{t + 5}, v{tmp}
v_bfe_u32 v{adr}, v{V_LANE}, 2, 2
v_lshrrev_b32 v{tmp + 5}, 5, v{V_LANE}
v_lshl_add_u32 v{adr}, v{tmp + 5}, 2, v{adr}
s_and_b32 s{t + 5}, s{S_WAVE}, 1
s_lshl_b32 s{t + 6}, s{t + 5}, 5
v_add_u32 v{adr}, s{t + 6}, v{adr}
v_mul_u32_u24 v{adr}, {TTP}, v{adr}
v_bfe_u32 v{tmp + 6}, v{V_LANE}, 4, 1
v_and_b32 v{tmp + 7}, 3, v{V_LANE}
v_lshl_add_u32 v{tmp + 6}, v{tmp + 6}, 2, v{tmp + 7}
v_lshl_add_u32 v{adr}, v{tmp + 6}, 3, v{adr}
s_lshr_b32 s{t + 6}, s{S_WAVE}, 1
s_lshl_b32 s{t + 6}, s{t + 6}, 6
s_add_u32 s{t + 6}, s{t + 6}, {ATL}
v_add_u32 v{adr}, s{t + 6}, v{adr}
s_lshl_b32 s{t + 2}, s{S_ROW0}, 10
s_lshl_b32 s{t + 3}, s{S_DB}, 7
s_add_u32 s{t + 2}, s{t + 2}, s{t + 3}
s_lshl_b32 s{t + 5}, s{t + 5}, 6
s_add_u32 s{t + 2}, s{t + 2}, s{t + 5}
v_and_b32 v{tmp + 2}, 31, v{V_LANE}
v_lshlrev_b32 v{tmp + 2}, 10, v{tmp + 2}
v_lshl_add_u32 v{tmp + 2}, v{tmp + 5}, 4, v{tmp + 2}
s_waitcnt lgkmcnt(0)
s_barrier""")
    for q in range(4):
        k(f"ds_read_b64_tr_b16 {vr(AT + 2 * q, 2)}, v{adr} offset:{8 * q * TTP}")
    for s in range(3):
        for q in range(4):
            k(f"ds_read_b128 {vr(G + 16 * s + 4 * q, 4)}, v{rd} offset:{4096 * s + 1024 * q}")
    X = 208
    g = G2_AT + 8
    gp = G2_AD + 14
    k(f"v_mov_b32 v{gp}, v{g}\nv_mov_b32 v{gp + 1}, v{g}")
    for q in range(4):
        for d in range(2):
            k(f"v_lshlrev_b32 v{X + 4 * q + 2 * d}, 16, v{AT + 2 * q + d}")
            k(f"v_and_b32 v{X + 4 * q + 2 * d + 1}, 0xffff0000, v{AT + 2 * q + d}")
    for s in range(3):
        for j in range(8):
            k(f"v_pk_add_f32 {vr(F + 2 * j, 2)}, {vr(F + 2 * j, 2)}, {vr(G + 16 * s + 2 * j, 2)}")
    for j in range(8):
        k(f"v_pk_add_f32 {vr(X + 2 * j, 2)}, {vr(X + 2 * j, 2)}, {vr(F + 2 * j, 2)} neg_lo:[0,1] neg_hi:[0,1]")
    for j in range(8):
        k(f"v_pk_fma_f32 {vr(F + 2 * j, 2)}, {vr(X + 2 * j, 2)}, {vr(gp, 2)}, {vr(F + 2 * j, 2)}")
    for j in range(8):
        k(f"v_cvt_pk_bf16_f32 v{P + j}, v{F + 2 * j}, v{F + 2 * j + 1}")
    for q in (0, 2):
        for x in range(2):
            k(f"v_permlane32_swap_b32 v{P + 2 * q + x}, v{P + 2 * q + 2 + x}")
    k(f"""buffer_store_dwordx4 {vr(P, 4)}, v{tmp + 2}, {sr(R_OUT, 4)}, s{t + 2} offen
buffer_store_dwordx4 {vr(P + 4, 4)}, v{tmp + 2}, {sr(R_OUT, 4)}, s{t + 2} offen offset:32""")


DBG_INIT = 8 * 4
V_POLL = 32
S_SPIN = 88


def dbg_ut_offset(k, sdst, scb):
    k(f"""s_and_b32 s{sdst}, s{scb}, 3
s_lshl_b32 s{sdst}, s{sdst}, 2
s_lshr_b32 s{sdst + 1}, s{scb}, 2
s_lshl_b32 s{sdst + 1}, s{sdst + 1}, 7
s_add_u32 s{sdst}, s{sdst}, s{sdst + 1}""")


def only_wave0(k, fn, lane0=False):
    skip = k.newlabel("L_w0")
    k(f"s_cmp_lg_u32 s{S_WAVE}, 0\ns_cbranch_scc1 {skip}")
    st = (list(k.lg), list(k.vm), k.vmcount)
    if lane0:
        k(f"s_mov_b64 exec, 1")
    fn()
    if lane0:
        k(f"s_mov_b64 exec, -1")
    k(f"{skip}:")
    k.lg, k.vm, k.vmcount = st


def init_zero(k):
    t = S_T0
    skip = k.newlabel("L_init")
    st = (list(k.lg), list(k.vm), k.vmcount)
    k(f"""s_or_b32 s{t}, s2, s{S_WAVE}
s_cmp_lg_u32 s{t}, 0
s_cbranch_scc1 {skip}
v_mov_b32 v4, 0
v_mov_b32 v5, 0
v_mov_b32 v6, 0
v_mov_b32 v7, 0
v_lshlrev_b32 v2, 4, v{V_LANE}""")
    for o in range(0, FL_BYTES, 1024):
        k(f"buffer_store_dwordx4 v[4:7], v2, {sr(R_WS, 4)}, 0 offen offset:{o} sc1" if o < 4096 else "")
    k(f"{skip}:")
    k.lg, k.vm, k.vmcount = st


def init_publish(k):
    t = S_T0
    skip = k.newlabel("L_initp")
    st = (list(k.lg), list(k.vm), k.vmcount)
    k(f"""s_or_b32 s{t}, s2, s{S_WAVE}
s_cmp_lg_u32 s{t}, 0
s_cbranch_scc1 {skip}
v_mov_b32 v4, 1
v_mov_b32 v2, {DBG_INIT}
s_mov_b64 exec, 1
buffer_store_dword v4, v2, {sr(R_DBG, 4)}, 0 offen sc1
s_mov_b64 exec, -1
{skip}:""")
    k.lg, k.vm, k.vmcount = st


def signal_ut(k):
    t = S_T0 + 8

    def fn():
        dbg_ut_offset(k, t, S_XCD)
        k(f"""v_mov_b32 v4, 1
v_mov_b32 v2, s{t}
buffer_atomic_add v4, v2, {sr(R_DBG, 4)}, 0 offen""")
    only_wave0(k, fn, lane0=True)


def signal_ws(k, scalar_off_fn):
    t = S_T0 + 8

    def fn():
        scalar_off_fn(t)
        k(f"""v_mov_b32 v4, 1
v_mov_b32 v2, s{t}
buffer_store_dword v4, v2, {sr(R_WS, 4)}, 0 offen sc1""")
    only_wave0(k, fn, lane0=True)


def poll_issue(k, base, rsrc, addr_fn):
    addr_fn(base + 1, base + 2)

    def fn():
        k(f"buffer_load_dword v{base}, v{base + 1}, {sr(rsrc, 4)}, 0 offen sc1")
    only_wave0(k, fn)
    k.pollmark = getattr(k, "pollmark", {})
    k.pollmark[base] = k.vmcount


def poll_check(k, base, rsrc):
    n = min(k.vmcount - k.pollmark[base], 63)

    def fn():
        done, loop = k.newlabel("L_pd"), k.newlabel("L_pl")
        k(f"""s_waitcnt vmcnt({n})
v_cmp_lt_u32 vcc, v{base}, v{base + 2}
s_cbranch_vccz {done}
s_mov_b32 s{S_SPIN}, 0
{loop}:
s_sleep 1
buffer_load_dword v{base}, v{base + 1}, {sr(rsrc, 4)}, 0 offen sc1
s_waitcnt vmcnt(0)
s_add_u32 s{S_SPIN}, s{S_SPIN}, 1
s_cmp_gt_u32 s{S_SPIN}, 0x40000
s_cbranch_scc1 {done}
v_cmp_lt_u32 vcc, v{base}, v{base + 2}
s_cbranch_vccnz {loop}
{done}:""")
    only_wave0(k, fn)


def addr_ut_init(k, with_ut=True):
    def fn(va, ve):
        t = S_T0 + 8
        k(f"s_lshr_b32 s{t + 2}, s2, 5")
        dbg_ut_offset(k, t, t + 2)
        k(f"""v_mov_b32 v{va}, {DBG_INIT}
v_mov_b32 v{ve}, 1""")
        if with_ut:
            k(f"""v_cmp_gt_u32 vcc, 32, v{V_LANE}
v_mov_b32 v{V_POLL + 9}, s{t}
v_cndmask_b32 v{va}, v{va}, v{V_POLL + 9}, vcc
v_cndmask_b32 v{ve}, 1, 32, vcc""")
    return fn


def addr_h(k):
    def fn(va, ve):
        t = S_T0 + 8
        k(f"""s_lshr_b32 s{t}, s{S_RBP}, 1
s_lshl_b32 s{t}, s{t}, 7
s_add_u32 s{t}, s{t}, {FL_H}
s_and_b32 s{t + 1}, s{S_RBP}, 1
s_add_u32 s{t + 1}, s{t + 1}, 14
v_mov_b32 v{ve}, s{t + 1}
v_cmp_gt_u32 vcc, 14, v{V_LANE}
v_cndmask_b32 v{va}, v{ve}, v{V_LANE}, vcc
v_lshl_add_u32 v{va}, v{va}, 2, s{t}
v_mov_b32 v{ve}, 1""")
    return fn


def addr_at(k):
    def fn(va, ve):
        t = S_T0 + 8
        k(f"""s_lshl_b32 s{t}, s{S_DB}, 7
s_add_u32 s{t}, s{t}, {FL_AT}
v_and_b32 v{va}, 31, v{V_LANE}
v_lshl_add_u32 v{va}, v{va}, 2, s{t}
v_mov_b32 v{ve}, 1""")
    return fn


P_UT, P_H, P_AT = 244, 248, 252


def wait_flags_at(k):
    poll_check(k, P_AT, R_WS)
    k("s_barrier")
    g2_at_load(k)


def dump_lds(k, lds_off, nbytes, ws_off_expr_s, V):
    k("s_waitcnt lgkmcnt(0)\ns_barrier")
    k(f"v_lshlrev_b32 v{V}, 4, v0")
    for o in range(0, nbytes, 4096):
        k(f"ds_read_b128 {vr(V + 2, 4)}, v{V} offset:{lds_off + o}" if lds_off + o < 65536 else
          f"v_add_u32 v{V + 1}, {lds_off + o}, v{V}\nds_read_b128 {vr(V + 2, 4)}, v{V + 1}")
        k(f"v_add_u32 v{V + 1}, {o}, v{V}")
        k(f"buffer_store_dwordx4 {vr(V + 2, 4)}, v{V + 1}, {sr(R_WS, 4)}, s{ws_off_expr_s} offen")
        k("s_waitcnt vmcnt(0)")


def wrap(name, body, vgpr=256, agpr=256):
    return f""".text
.globl {name}
.p2align 8
.type {name},@function
{name}:
{body}
.section .rodata,"a"
.p2align 6
.amdhsa_kernel {name}
  .amdhsa_next_free_vgpr {vgpr + agpr}
  .amdhsa_next_free_sgpr 102
  .amdhsa_accum_offset {vgpr}
  .amdhsa_group_segment_fixed_size 0
  .amdhsa_kernarg_size 136
  .amdhsa_user_sgpr_count 2
  .amdhsa_user_sgpr_kernarg_segment_ptr 1
  .amdhsa_system_sgpr_workgroup_id_x 1
.end_amdhsa_kernel
"""


def table_text():
    tab = gather_table()
    out = [".text", ".p2align 8", ".type L_gtab,@object", "L_gtab:"]
    for i in range(0, len(tab), 16):
        out.append("  .short " + ", ".join(str(x) for x in tab[i:i + 16]))
    out.append(".size L_gtab, .-L_gtab")
    return "\n".join(out) + "\n"


def build_multi(dump=None):
    out = []
    k = Asm(); k.kname = "a"; k.single = False
    end = "L_end_a"
    prologue(k, end)
    phase_t_load(k, 8)
    spare, join = "L_spare_a", "L_join_a"
    k(f"s_cmp_ge_u32 s{S_J}, 28\ns_cbranch_scc1 {spare}")
    st = (list(k.lg), list(k.vm))
    g1_role(k)
    g1_setup(k)
    g1_bias_load(k, 64)
    g1_prologue_dma(k)
    phase_t_rest(k, 8)
    stamp(k, 1)
    g1_bias(k, 64)
    g1_main(k)
    stamp(k, 2)
    g1_epilogue(k)
    stamp(k, 3)
    k("s_waitcnt vmcnt(0)")
    stamp(k, 4)
    stamp_flush(k, 0)
    k(f"s_branch {end}\n{spare}:")
    k.lg, k.vm = st
    phase_t_rest(k, 8)
    phase_gate(k)
    k("s_waitcnt vmcnt(0)")
    stamp(k, 4)
    stamp_flush(k, 0)
    k(f"{end}:\ns_endpgm")
    out.append(wrap("ka_kernel", k.finish()))
    k = Asm(); k.kname = "b"; k.single = False
    end = "L_end_b"
    prologue(k, end)
    phase_k_load(k, 8)
    conv_uload(k, 200)
    k("s_waitcnt vmcnt(4)")
    stamp(k, 1)
    phase_k_tables(k, 8, 24)
    stamp(k, 2)
    phase_k_mfma(k, 8, 24)
    stamp(k, 3)
    phase_k_expand(k, 8, 24)
    if dump == "k":
        k(f"s_mul_i32 s{S_T0}, s2, {4 * 4096 + 4096}\ns_add_u32 s{S_T0}, s{S_T0}, {WS_DBG}")
        dump_lds(k, CV, 5 * 4096, S_T0, 24)
    conv_ustore(k, 200)
    stamp(k, 4)
    conv_main(k)
    stamp(k, 5)
    conv_finish(k)
    k("s_waitcnt vmcnt(0)")
    stamp(k, 6)
    stamp_flush(k, 1)
    k(f"{end}:\ns_endpgm")
    out.append(wrap("kb_kernel", k.finish()))
    k = Asm(); k.kname = "c"; k.single = False
    end = "L_end_c"
    prologue(k, end)
    g2_role(k)
    for ks in range(16):
        g2_wdma(k, ks)
    for ks in range(G2_DEPTH):
        g2_hload(k, ks)
    stamp(k, 1)
    g2_zero(k)
    g2_main(k)
    stamp(k, 2)
    g2_finish(k)
    k("s_waitcnt vmcnt(0)")
    stamp(k, 3)
    stamp_flush(k, 2)
    k(f"{end}:\ns_endpgm")
    out.append(wrap("kc_kernel", k.finish()))
    head = "".join(f"; @launch kernel={n} grid=(256,1,1) block=(256,1,1) lds={LDS_BYTES}\n" for n in ("ka_kernel", "kb_kernel", "kc_kernel"))
    return head + '.amdgcn_target "amdgcn-amd-amdhsa--gfx950"\n' + "".join(out) + table_text()


def set_single():
    global TT, NS, W2R, W2STRIDE, G2_DEPTH, G2_ACC
    TT = CV
    NS = 4
    W2R = 12
    W2STRIDE = 24576
    G2_DEPTH = 14
    G2_ACC = 128


def build_single():
    set_single()
    k = Asm(); k.kname = "s"; k.single = True
    end = "L_end"
    KV, TV = 8, 22
    prologue(k, end)
    init_zero(k)
    phase_t_load(k, TV)
    spare, join = "L_spare", "L_join"
    k(f"s_cmp_ge_u32 s{S_J}, 28\ns_cbranch_scc1 {spare}")
    st = (list(k.lg), list(k.vm), k.vmcount)
    g1_role(k)
    g1_setup(k)
    g1_issue(k, 0)
    g1_bias_load(k, 64)
    phase_t_rest(k, TV)
    init_publish(k)
    g1_issue(k, 1)
    g1_issue(k, 2)
    stamp(k, 1)
    g1_bias(k, 64)

    def after(k):
        skip = k.newlabel("L_sig")
        k(f"s_cmp_lg_u32 s{S_G1C}, 1\ns_cbranch_scc1 {skip}")
        signal_ut(k)
        k(f"{skip}:")
    g1_main(k, after)
    stamp(k, 2)
    poll_issue(k, P_UT, R_DBG, addr_ut_init(k))
    phase_k_load(k, KV)
    g2_role(k)
    k("s_barrier")
    fill = []
    for ks in range(W2R):
        fill += g2_wdma_ops(k, ks)
    g1_epilogue(k, fill)
    stamp(k, 3)
    k("s_waitcnt vmcnt(0)\ns_barrier")
    poll_check(k, P_UT, R_DBG)
    signal_ws(k, lambda t: k(f"""s_lshl_b32 s{t}, s{S_RB}, 7
s_lshl_b32 s{t + 1}, s{S_FS}, 2
s_add_u32 s{t}, s{t}, s{t + 1}
s_add_u32 s{t}, s{t}, {FL_H}"""))
    k(f"s_branch {join}\n{spare}:")
    k.lg, k.vm, k.vmcount = st
    phase_t_rest(k, TV)
    phase_gate(k)
    k("s_waitcnt vmcnt(0)\ns_barrier")
    signal_ut(k)
    stamp(k, 1)
    poll_issue(k, P_UT, R_DBG, addr_ut_init(k, with_ut=False))
    k("s_waitcnt vmcnt(0)")
    poll_check(k, P_UT, R_DBG)
    signal_ws(k, lambda t: k(f"""s_lshl_b32 s{t}, s{S_XCD}, 2
s_add_u32 s{t}, s{t}, s{S_J}
s_sub_u32 s{t}, s{t}, 28
s_and_b32 s{t + 1}, s{t}, 1
s_add_u32 s{t + 1}, s{t + 1}, 14
s_lshl_b32 s{t + 1}, s{t + 1}, 2
s_lshr_b32 s{t}, s{t}, 1
s_lshl_b32 s{t}, s{t}, 7
s_add_u32 s{t}, s{t}, s{t + 1}
s_add_u32 s{t}, s{t}, {FL_H}"""))
    if "nopf" not in EXP:
        spare_w2_prefetch(k, PFN)
    stamp(k, 2)
    poll_issue(k, P_UT, R_DBG, addr_ut_init(k))
    phase_k_load(k, KV)
    g2_role(k)
    for ks in range(W2R):
        g2_wdma(k, ks)
    poll_check(k, P_UT, R_DBG)
    k(f"s_waitcnt vmcnt({2 * W2R})")
    stamp(k, 3)
    k(f"{join}:")
    k.forget()
    k("s_barrier")
    stamp(k, 4)
    conv_uload(k, 200)
    phase_k_tables(k, KV, 24)
    stamp(k, 5)
    phase_k_mfma(k, KV, 24)
    phase_k_expand(k, KV, 24)
    conv_ustore(k, 200)
    stamp(k, 6)
    poll_issue(k, P_H, R_WS, addr_h(k))

    def mid():
        poll_check(k, P_H, R_WS)
        k("s_barrier")
        f = []
        for ks in range(G2_DEPTH):
            f += g2_hload_ops(k, ks)
        return f
    conv_main(k, {CONV_MID: mid})
    stamp(k, 7)
    conv_finish(k)
    stamp(k, 8)

    def sig_at():
        k.wait_tag("astore")
        k("s_barrier")
        signal_ws(k, lambda t: k(f"""s_lshr_b32 s{t}, s2, 5
s_lshl_b32 s{t}, s{t}, 7
s_and_b32 s{t + 1}, s2, 31
s_lshl_b32 s{t + 1}, s{t + 1}, 2
s_add_u32 s{t}, s{t}, s{t + 1}
s_add_u32 s{t}, s{t}, {FL_AT}"""))
    g2_main(k, {1: sig_at, 20: lambda: poll_issue(k, P_AT, R_WS, addr_at(k)), 23: lambda: wait_flags_at(k)})
    stamp(k, 9)
    g2_finish(k)
    if STAMPS:
        k("s_waitcnt vmcnt(0)")
    stamp(k, 10)
    stamp_flush(k, 0)
    k(f"{end}:\ns_endpgm")
    body = k.finish()
    head = f"; @launch grid=(256,1,1) block=(256,1,1) lds={LDS_BYTES}\n"
    return head + '.amdgcn_target "amdgcn-amd-amdhsa--gfx950"\n' + wrap(KNAME, body, 256, 192) + table_text()


CONV_MID = 1
PFN = 32


if __name__ == "__main__":
    ap = argparse.ArgumentParser()
    ap.add_argument("--mode", default="multi")
    ap.add_argument("--dump", default=None)
    ap.add_argument("--stamps", action="store_true")
    ap.add_argument("--exp", default="")
    a = ap.parse_args()
    STAMPS = a.stamps
    EXP = set(a.exp.split(",")) if a.exp else set()
    if a.mode == "multi":
        sys.stdout.write(build_multi(a.dump))
    else:
        sys.stdout.write(build_single())
```
